```python
import torch

def _softmax(x, axis=-1):
    return torch.softmax(x, dim=axis)

def _gelu(x):
    return torch.nn.functional.gelu(x, approximate='tanh')

def _silu(x):
    return torch.nn.functional.silu(x)

def _sigmoid(x):
    return torch.sigmoid(x)

def _layernorm(x, axis=-1, eps=1e-05):
    m = x.mean(dim=axis, keepdim=True)
    v = x.var(dim=axis, keepdim=True, unbiased=False)
    return (x - m) / torch.sqrt(v + eps)

def _scatter_add(tgt, idx, src, axis=0):
    return tgt.clone().index_add_(axis, idx, src)

def _segment_sum(src, seg, n):
    out = torch.zeros((n,) + src.shape[1:], dtype=src.dtype)
    return out.index_add_(0, seg, src)

def _pad(x, pw):
    flat = tuple((v for pair in reversed(pw) for v in pair))
    return torch.nn.functional.pad(x, flat)
kernel_name = 'recurrent_scan__linear_attn_block__mixer_gmlp__prompt'

def setup_inputs():

    _w = lambda a: (lambda t: t.to(torch.bfloat16) if t.is_floating_point() else t)(torch.as_tensor(a))

    def _A_setup():
        B, S, D = (1, 2048, 512)
        return {'x': _w((lambda *s: torch.randn(*s, dtype=torch.bfloat16) * 0.05)(B, S, D)), 'wqkv': _w((lambda *s: torch.randn(*s, dtype=torch.bfloat16) * 0.05)(D, 3 * D)), 'wo': _w((lambda *s: torch.randn(*s, dtype=torch.bfloat16) * 0.05)(D, D))}
    _A_in = _A_setup()

    def _B_setup():
        B, S, D, F = (1, 2048, 512, 1792)
        Fh = F // 2
        return {'x': _w((lambda *s: torch.randn(*s, dtype=torch.bfloat16) * 0.05)(B, S, D)), 'w_in': _w((lambda *s: torch.randn(*s, dtype=torch.bfloat16) * 0.8)(D, 2 * Fh)), 'w_sp': _w(0.01 * (lambda *s: torch.randn(*s, dtype=torch.bfloat16) * 0.8)(S, S)), 'b_sp': _w(1.0 + 0.01 * (lambda *s: torch.randn(*s, dtype=torch.bfloat16) * 0.05)(S)), 'w_out': _w((lambda *s: torch.randn(*s, dtype=torch.bfloat16) * 0.05)(Fh, D))}
    _B_in = _B_setup()
    return {'A_x': _A_in['x'], 'A_wqkv': _A_in['wqkv'], 'A_wo': _A_in['wo'], 'B_x': _B_in['x'], 'B_w_in': _B_in['w_in'], 'B_w_sp': _B_in['w_sp'], 'B_b_sp': _B_in['b_sp'], 'B_w_out': _B_in['w_out']}

def reference(A_x, A_wqkv, A_wo, B_x, B_w_in, B_w_sp, B_b_sp, B_w_out):

    def _A_ref(x, wqkv, wo):
        B, S, D = x.shape
        H = 32
        Dh = D // H
        qkv = (lambda x, *d: x.permute(*d))((x @ wqkv).reshape(B, S, 3, H, Dh), 2, 0, 3, 1, 4)
        q, k, v = (qkv[0], qkv[1], qkv[2])
        phi = lambda t: torch.where(t > 0, t + 1, torch.exp(t)) + 1e-06
        pq, pk = (phi(q), phi(k))
        kv = torch.einsum('bhsd,bhse->bhde', pk, v)
        z = torch.einsum('bhsd->bhd', pk)
        num = torch.einsum('bhqd,bhde->bhqe', pq, kv)
        den = torch.einsum('bhqd,bhd->bhq', pq, z)[..., None] + 1e-06
        o = num / den
        return (lambda x, *d: x.permute(*d))(o, 0, 2, 1, 3).reshape(B, S, D) @ wo

    def _B_ref(x, w_in, w_sp, b_sp, w_out):
        B, S, D = x.shape
        F = w_in.shape[-1]
        Fh = F // 2
        z = _gelu(torch.einsum('bsd,df->bsf', x, w_in))
        z1 = z[..., :Fh].clone()
        z2 = _layernorm(z[..., Fh:], axis=-1)
        g = torch.einsum('ts,bsf->btf', w_sp, z2) + b_sp[None, :, None]
        return torch.einsum('bsf,fd->bsd', z1 * g, w_out)
    x = A_x
    xn = _layernorm(x, axis=-1)
    s = _A_ref(xn, A_wqkv, A_wo)
    g = _silu(_B_ref(xn, B_w_in, B_w_sp, B_b_sp, B_w_out))
    return x + s * g
```

```python
import re

def v(i, n=1):
    return f"v{i}" if n == 1 else f"v[{i}:{i+n-1}]"
def s(i, n=1):
    return f"s{i}" if n == 1 else f"s[{i}:{i+n-1}]"

_REG = re.compile(r"^(-?)(\|?)([vsa])(?:(\d+)|\[(\d+):(\d+)\])(\|?)$")
def regs_of(tok):
    tok = tok.strip()
    if tok.startswith("abs(") or tok.startswith("neg("):
        tok = tok[4:-1]
    if tok == "vcc": return {("s", 106), ("s", 107)}
    if tok == "exec": return {("s", 126), ("s", 127)}
    if tok == "m0": return {("s", 124)}
    if tok == "exec_hi": return {("s",127)}
    if tok == "exec_lo": return {("s",126)}
    if tok in ("vcc_lo",): return {("s",106)}
    if tok in ("vcc_hi",): return {("s",107)}
    m = _REG.match(tok)
    if not m: return set()
    f = m.group(3)
    if m.group(4) is not None:
        return {(f, int(m.group(4)))}
    return {(f, i) for i in range(int(m.group(5)), int(m.group(6)) + 1)}

TRANS = ("v_exp_f32", "v_log_f32", "v_rcp_f32", "v_rsq_f32", "v_sqrt_f32", "v_sin_f32", "v_cos_f32")

class Ins:
    __slots__ = ("text", "op", "ops", "kind", "wr", "rd", "label", "target", "ws", "passes", "srcC", "srcAB", "dpp", "comment")
    def __init__(self, text):
        self.text = text
        t = text.split(";")[0].strip()
        self.label = None; self.target = None; self.passes = 0
        self.wr = set(); self.rd = set(); self.srcC = set(); self.srcAB = set(); self.dpp = False
        self.ws = 1
        if t.endswith(":"):
            self.kind = "label"; self.label = t[:-1]; self.op = ""; self.ops = []; self.ws = 0; return
        if t.startswith(".") or t == "":
            self.kind = "dir"; self.op = ""; self.ops = []; self.ws = 0; return
        parts = t.split(None, 1)
        self.op = op = parts[0]
        rest = parts[1] if len(parts) > 1 else ""
        ops = []; cur = ""; depth = 0
        for ch in rest:
            if ch == "[": depth += 1
            if ch == "]": depth -= 1
            if ch == "," and depth == 0:
                ops.append(cur.strip()); cur = ""
            else: cur += ch
        if cur.strip(): ops.append(cur.strip())
        mods = ""
        if ops:
            last = ops[-1].split()
            ops[-1] = last[0]; mods = " ".join(last[1:])
        self.ops = ops
        R = regs_of
        if op.startswith("v_mfma"):
            self.kind = "mfma"
            self.passes = 8 if "32x32x16" in op else 4
            self.wr = R(ops[0]); self.srcAB = R(ops[1]) | R(ops[2]); self.srcC = R(ops[3]); self.rd = self.srcAB | self.srcC
        elif op.startswith("v_"):
            self.kind = "valu"
            self.dpp = ("dpp" in op) or ("row_" in mods) or ("quad_perm" in mods)
            if op.startswith("v_cmp"):
                self.wr = R(ops[0]);
                for o in ops[1:]: self.rd |= R(o)
            elif op.startswith("v_permlane") :
                self.wr = R(ops[0]) | R(ops[1]); self.rd = set(self.wr)
            elif op.startswith("v_readfirstlane") or op.startswith("v_readlane"):
                self.wr = R(ops[0])
                for o in ops[1:]: self.rd |= R(o)
            else:
                self.wr = R(ops[0])
                for o in ops[1:]: self.rd |= R(o)
                if op.startswith(("v_fmac", "v_dot2c", "v_mac", "v_fmaak", "v_fmamk")) and op.startswith(("v_fmac", "v_dot2c")):
                    self.rd |= R(ops[0])
                if op.startswith("v_cndmask") and len(ops) == 3:
                    self.rd |= R("vcc")
                if op.startswith(("v_add_co", "v_addc_co", "v_sub_co")):
                    self.wr |= R(ops[1])
                if self.dpp: self.rd |= R(ops[0])
        elif op.startswith("ds_"):
            self.kind = "ds"
            if op.startswith("ds_read") or op.startswith("ds_bpermute") or op.startswith("ds_swizzle"):
                self.wr = R(ops[0])
                for o in ops[1:]: self.rd |= R(o)
            else:
                for o in ops: self.rd |= R(o)
        elif op.startswith("buffer_") or op.startswith("global_"):
            self.kind = "vmem"
            islds = " lds" in (" " + mods)
            if op.startswith("buffer_inv") or op.startswith("buffer_wbl2"):
                pass
            elif op.startswith("buffer_load") and not islds:
                self.wr = R(ops[0])
                for o in ops[1:]: self.rd |= R(o)
            elif op.startswith("buffer_load"):
                for o in ops: self.rd |= R(o)
                self.rd |= R("m0"); self.kind = "vmemlds"
            elif op.startswith("global_load"):
                self.wr = R(ops[0])
                for o in ops[1:]: self.rd |= R(o)
            else:
                for o in ops: self.rd |= R(o)
        elif op.startswith("s_"):
            self.kind = "salu"
            if op == "s_nop":
                self.ws = int(ops[0], 0) + 1
            elif op in ("s_branch",) or op.startswith("s_cbranch"):
                self.target = ops[0]
                if "vcc" in op: self.rd |= R("vcc")
                if "exec" in op: self.rd |= R("exec")
            elif op.startswith(("s_cmp", "s_waitcnt", "s_barrier", "s_endpgm", "s_sleep", "s_setprio", "s_bitcmp")):
                for o in ops: self.rd |= R(o)
            elif op.startswith("s_load") or op.startswith("s_memtime") or op.startswith("s_memrealtime") or op.startswith("s_getpc") or op.startswith("s_getreg"):
                self.wr = R(ops[0])
                for o in ops[1:]: self.rd |= R(o)
            else:
                self.wr = R(ops[0])
                for o in ops[1:]: self.rd |= R(o)
                if "saveexec" in op: self.wr |= R("exec"); self.rd |= R("exec")
        else:
            raise ValueError("unknown op " + text)

    def is_wide_store(self):
        return self.kind == "vmem" and (self.op.endswith("dwordx4") or self.op.endswith("dwordx3")) and "store" in self.op

def need(p, c):
    n = 0
    isv = lambda st: {r for r in st if r[0] in "va"}
    iss = lambda st: {r for r in st if r[0] == "s"}
    if p.kind == "valu":
        pw = isv(p.wr); sw = iss(p.wr)
        if c.kind == "mfma" and pw & c.rd: n = max(n, 2)
        if c.kind == "valu":
            if c.op.startswith("v_permlane") and pw & c.rd: n = max(n, 2)
            if c.dpp and pw & c.rd: n = max(n, 2)
            if (c.op.startswith("v_readfirstlane") or c.op.startswith("v_readlane")) and pw & c.rd: n = max(n, 1)
            if p.op.split("_e")[0] in TRANS or p.op in TRANS:
                if pw & c.rd and not (c.op in TRANS): n = max(n, 1)
                if pw & c.rd and (c.op in TRANS): n = max(n, 1)
            if sw & c.rd: n = max(n, 2)
            if c.op.startswith(("v_readlane","v_writelane")) and sw & c.rd: n = max(n,4)
        if c.kind in ("vmem", "vmemlds") and sw & c.rd: n = max(n, 5)
        if c.kind == "salu" and sw & c.rd: n = max(n, 4)
        if ("s",126) in p.wr and c.kind == "mfma": n = max(n,4)
    if p.kind == "valu" and p.op.startswith("v_dot"):
        pw = isv(p.wr)
        if pw & (c.rd | c.wr):
            if c.op == p.op:
                ab = set()
                for o in c.ops[1:3]: ab |= regs_of(o)
                if pw & ab: n = max(n, 3)
            else:
                n = max(n, 3)
    if p.kind == "mfma":
        P = p.passes
        t_valu = {4: 8, 8: 12}[P]
        if c.kind == "valu" and p.wr & (c.rd | c.wr): n = max(n, t_valu)
        if c.kind in ("vmem", "vmemlds", "ds") and p.wr & (c.rd | c.wr): n = max(n, t_valu)
        if c.kind == "mfma":
            if p.wr & c.srcAB: n = max(n, t_valu)
            if p.wr & c.srcC:
                if not (p.wr == c.srcC and p.passes == c.passes): n = max(n, {4: 6, 8: 10}[P])
            if (p.wr & c.wr) and not (p.wr & c.srcC): n = max(n, t_valu)
        if c.kind == "valu" and p.srcC & c.wr: n = max(n, {4: 3, 8: 7}[P])
        if c.kind in ("ds","vmem") and p.srcC & c.wr: n = max(n, {4: 3, 8: 7}[P])
    if p.kind == "salu":
        if ("s", 124) in p.wr and c.kind == "vmemlds": n = max(n, 1)
    if p.is_wide_store() and c.kind == "valu":
        data = regs_of(p.ops[0])
        if data & c.wr: n = max(n, 2)
    if p.kind == "ds" and p.op.startswith("ds_write") and c.kind == "valu":
        pass
    return n

MAXWS = 14

class Asm:
    def __init__(self):
        self.lines = []
        self.uid = 0
    def __call__(self, text):
        for t in text.split("\n"):
            t = t.strip()
            if t: self.lines.append(t)
    def label(self, name): self.lines.append(name + ":")
    def newlabel(self, base="L"):
        self.uid += 1; return f"{base}_{self.uid}"
    def fix_hazards(self, verbose=False):
        ins = [Ins(t) for t in self.lines]
        inserted = 0
        def index():
            srcs = {}
            for i, x in enumerate(ins):
                if x.target: srcs.setdefault(x.target, []).append(i)
            return srcs
        srcs = index()
        def falls_into(j):
            q = j - 1
            while q >= 0 and ins[q].kind in ("dir", "label"): q -= 1
            return not (q >= 0 and ins[q].op in ("s_branch", "s_endpgm"))
        i = 0
        while i < len(ins):
            c = ins[i]
            if c.kind in ("label", "dir"): i += 1; continue
            deficit = 0
            stack = [(i - 1, 0)]
            if i > 0 and ins[i-1].kind not in ("label","dir") and ins[i-1].op in ("s_branch","s_endpgm"): stack = []
            seen = {}
            while stack:
                j, acc = stack.pop()
                if j < 0 or acc >= MAXWS: continue
                if seen.get(j, 99) <= acc: continue
                seen[j] = acc
                p = ins[j]
                if p.kind == "label":
                    for b in srcs.get(p.label, []): stack.append((b, acc))
                    if falls_into(j): stack.append((j - 1, acc))
                    continue
                if p.kind == "dir":
                    stack.append((j - 1, acc)); continue
                nreq = need(p, c)
                if nreq > acc: deficit = max(deficit, nreq - acc)
                if j > 0 and ins[j-1].kind not in ("label","dir") and ins[j-1].op in ("s_branch","s_endpgm"):
                    continue
                stack.append((j - 1, acc + p.ws))
            if deficit > 0:
                n = deficit; new = []
                while n > 0:
                    k = min(n, 16); new.append(Ins(f"s_nop {k-1}")); n -= k
                ins[i:i] = new
                inserted += len(new)
                if verbose: print("hazard: inserted", deficit, "before", c.text)
                srcs = index()
                i += len(new)
            i += 1
        self.lines = [x.text for x in ins]
        return inserted
    def text(self):
        out = []
        for t in self.lines:
            if t.endswith(":") or t.startswith("."): out.append(t)
            else: out.append("    " + t)
        return "\n".join(out) + "\n"
```

```python
import sys, math, os, struct
sys.path.insert(0, "dev")
from asmlib import Asm

KNAME = "recurrent_scan__linear_attn_block__mixer_gmlp__prompt_kernel"
OPT = set(os.environ.get('GOPT', '').split(','))

WS_FINIT = 0x000000
WS_FDONE = 0x002000
WS_EPOCH = 0x004000
WS_XS    = 0x008000
WS_CSG   = 0x010000
WS_STATS = 0x030000
WS_KVP   = 0x080000
WS_KVT   = 0x120000
WS_Z2N   = 0x200000
WS_Z1    = 0x600000
WS_PQ    = 0xA00000
WS_U     = 0xC00000
WS_DBG   = 0x1000000
WS_BYTES = 268435456
OOB = 0x7F000000

LDS_BYTES = 163840
SLOT = 8192
L_CSU = 18 * SLOT
L_CSB = 17 * SLOT
L_ST2 = 18 * SLOT
L_ZW  = 18 * SLOT + 1024
L_KVW = 12 * SLOT

LOG2E = 1.4426950408889634
K1 = -2.0 * LOG2E * math.sqrt(2.0 / math.pi)
K2 = K1 * 0.044715
def f2u(x): return struct.unpack("<I", struct.pack("<f", x))[0]
def hexf(x): return hex(f2u(x))

S_WG = 2
SRD_X = 4; SRD_W = 8; SRD_WS = 12; SRD_T = 16
P_WQKV = 20; P_WIN = 22
S_WAVE = 24; S_P = 25; S_E = 26; S_R = 27; S_C = 28; S_TAG = 29; S_ONES = 30
S_T0 = 31; S_T1 = 32; S_T2 = 33; S_T3 = 34
S_XB = 35; S_I = 36; S_NB = 37; S_B32 = 38; S_ECUR = 39
S_BCOL = 40; S_BMAT = 44; S_BTYP = 48; S_BIDX = 52
S_LA = 56; S_LB = 57; S_CUR = 58; S_WSTR = 59
S_SAVE = 60
S_SZQ = 62; S_SZI = 63
S_ROTK = 64
S_W64 = 72; S_WBASE = 73; S_M0W = 74; S_M0X = 75; S_PH = 76; S_NI = 77
S_BI = 78; S_BJ = 79
S_SPIN = 80; S_EPS6 = 81; S_CT = 82; S_CI = 83
S_TS = 84
P_WSP = 88; P_BSP = 90; P_WO = 92; P_WOUT = 94; P_OUT = 96
S_RHO = 40; S_TAU = 41; S_ZB = 42; S_ZCUR = 43; S_ZNXT = 44; S_SLOT = 45; S_SPB = 46; S_PSL = 47; S_PSIG = 48; S_ZLEFT = 49

V_TID = 0; V_L16 = 1; V_Z1O = 2; V_Z2O = 3; V_WA = 4; V_WDQ = 5; V_WDI = 6; V_WD = 7
V_LANE = 8; V_ST = 9
C_A = 10; C_B = 11; C_S = 12; C_R = 13; C_RL = 14; V_M0 = 15
XAUG = 16; WAUG = 20; I0 = 24; I1 = 28
V_WAA = 32; V_WAB = 33; V_FL = 34
V_M1 = 38; V_M2 = 39
V_XA = 40
V_XDE = 44; V_XDO = 45
CSA = 40
RET = 48; PK = 64; PP = 72; WF = 80; TMP = 96; ACC = 112; XF = 128
T_G1, T_G2, T_Q, T_K, T_V = 0, 1, 2, 3, 4

DBG = False
def stamp(a, k):
    if not DBG: return
    a(f"s_memtime s[{S_TS}:{S_TS+1}]"); a("s_waitcnt lgkmcnt(0)")
    a(f"v_writelane_b32 v{V_ST}, s{S_TS}, {k}")
def stamp_dyn(a, base):
    if not (DBG and 'fine' in OPT): return
    a(f"s_memtime s[{S_TS}:{S_TS+1}]"); a(f"s_add_u32 s{S_TS+2}, s{S_I}, {base}"); a("s_waitcnt lgkmcnt(0)")
    a(f"s_mov_b32 m0, s{S_TS+2}")
    a(f"v_writelane_b32 v{V_ST}, s{S_TS}, m0")
def dump_stamps(a):
    if not DBG: return
    a(f"s_lshl_b32 s{S_T0}, s{S_WG}, 3"); a(f"s_add_u32 s{S_T0}, s{S_T0}, s{S_WAVE}"); a(f"s_lshl_b32 s{S_T0}, s{S_T0}, 8"); a(f"s_add_u32 s{S_T0}, s{S_T0}, {WS_DBG}")
    a(f"v_lshlrev_b32 v{TMP}, 2, v{V_LANE}")
    a(f"buffer_store_dword v{V_ST}, v{TMP}, s[{SRD_WS}:{SRD_WS+3}], s{S_T0} offen")

class VM:
    def __init__(self): self.ops = []
    def issue(self, tag, n=1): self.ops += [tag]*n
    def count_after(self, tags):
        last = max(i for i, t in enumerate(self.ops) if t in tags)
        return len(self.ops) - 1 - last
    def wait(self, a, tags, extra=""):
        n = self.count_after(tags)
        assert n <= 63
        a(f"s_waitcnt vmcnt({n}) {extra}".strip())

WS = f"s[{SRD_WS}:{SRD_WS+3}]"

def setup_first(a):
    a(f"s_cmp_ge_u32 s{S_WG}, 256")
    a("s_cbranch_scc1 L_end")
    a(f"s_load_dwordx2 s[{SRD_X}:{SRD_X+1}], s[0:1], 0")
    a(f"s_load_dwordx2 s[{P_WQKV}:{P_WQKV+1}], s[0:1], 8")
    a(f"s_load_dwordx2 s[{P_WIN}:{P_WIN+1}], s[0:1], 32")
    a(f"s_load_dwordx2 s[{SRD_WS}:{SRD_WS+1}], s[0:1], 80")
    a(f"s_load_dwordx2 s[{P_WSP}:{P_WSP+1}], s[0:1], 40")
    a(f"s_load_dwordx2 s[{P_BSP}:{P_BSP+1}], s[0:1], 48")
    a(f"s_load_dwordx2 s[{P_WO}:{P_WO+1}], s[0:1], 16")
    a(f"s_load_dwordx2 s[{P_WOUT}:{P_WOUT+1}], s[0:1], 56")
    a(f"s_load_dwordx2 s[{P_OUT}:{P_OUT+1}], s[0:1], 64")
    L = V_LANE; T = TMP
    a(f"v_lshrrev_b32 v{T}, 6, v0")
    a(f"v_and_b32 v{L}, 63, v0")
    a(f"v_readfirstlane_b32 s{S_WAVE}, v{T}")
    a(f"v_lshlrev_b32 v{V_L16}, 4, v{L}")
    a(f"v_lshrrev_b32 v{T}, 3, v{L}"); a(f"v_and_b32 v{T+1}, 7, v{L}"); a(f"v_lshrrev_b32 v{T+2}, 1, v{T}")
    a(f"v_xor_b32 v{T+3}, v{T+1}, v{T+2}"); a(f"v_lshlrev_b32 v{T+3}, 4, v{T+3}")
    a(f"v_lshl_add_u32 v{V_XDE}, v{T}, 10, v{T+3}"); a(f"v_xor_b32 v{V_XDO}, 64, v{V_XDE}")
    a(f"v_and_b32 v{T+2}, 1, v{T+2}"); a(f"v_lshlrev_b32 v{T+2}, 2, v{T+2}"); a(f"v_xor_b32 v{T+2}, v{T+1}, v{T+2}"); a(f"v_lshlrev_b32 v{T+2}, 4, v{T+2}")
    a(f"v_mul_u32_u24 v{T+3}, 3072, v{T}"); a(f"v_add_u32 v{V_WDQ}, v{T+3}, v{T+2}")
    a(f"v_mul_u32_u24 v{T+3}, 3584, v{T}"); a(f"v_add_u32 v{V_WDI}, v{T+3}, v{T+2}")
    a(f"s_and_b32 s{S_P}, s{S_WAVE}, 3"); a(f"s_lshr_b32 s{S_E}, s{S_WAVE}, 2")
    a(f"s_and_b32 s{S_T0}, s{S_WG}, 1"); a(f"s_lshl_b32 s{S_T0}, s{S_T0}, 3")
    a(f"s_lshr_b32 s{S_T1}, s{S_WG}, 3"); a(f"s_and_b32 s{S_T2}, s{S_T1}, 7")
    a(f"s_add_u32 s{S_R}, s{S_T0}, s{S_T2}")
    a(f"s_lshr_b32 s{S_T0}, s{S_WG}, 1"); a(f"s_and_b32 s{S_T0}, s{S_T0}, 3"); a(f"s_lshl_b32 s{S_T3}, s{S_T0}, 2")
    a(f"s_lshr_b32 s{S_T1}, s{S_T1}, 3"); a(f"s_add_u32 s{S_C}, s{S_T3}, s{S_T1}")
    a(f"s_lshl_b32 s{S_BI}, s{S_T0}, 3"); a(f"s_add_u32 s{S_BI}, s{S_BI}, s{S_T2}")
    a(f"s_and_b32 s{S_BJ}, s{S_WG}, 1"); a(f"s_lshl_b32 s{S_BJ}, s{S_BJ}, 2"); a(f"s_add_u32 s{S_BJ}, s{S_BJ}, s{S_T1}")
    a(f"s_mov_b32 s{S_ONES}, 0x3f803f80")
    a(f"s_lshl_b32 s{S_B32}, s{S_R}, 2"); a(f"s_add_u32 s{S_B32}, s{S_B32}, s{S_P}")
    a(f"s_lshl_b32 s{S_XB}, s{S_R}, 17"); a(f"s_lshl_b32 s{S_T0}, s{S_WAVE}, 14"); a(f"s_add_u32 s{S_XB}, s{S_XB}, s{S_T0}")
    a(f"s_and_b32 s{S_T0}, s{S_C}, 3"); a(f"s_lshl_b32 s{S_T0}, s{S_T0}, 1"); a(f"s_add_u32 s{S_T0}, s{S_T0}, s{S_R}")
    for m in range(8):
        a(f"s_add_u32 s{S_ROTK+m}, s{S_T0}, {m}"); a(f"s_and_b32 s{S_ROTK+m}, s{S_ROTK+m}, 7")
    a(f"s_lshl_b32 s{S_M0W}, s{S_WAVE}, 10"); a(f"s_lshl_b32 s{S_M0X}, s{S_WAVE}, 11")
    a(f"s_mov_b32 s{S_SZQ}, {512*1536*2}"); a(f"s_mov_b32 s{S_SZI}, {512*1792*2}")
    lx, ly, ld = "L_tX", "L_tY", "L_tdone"
    def blk(b, col, mat, typ, idx):
        a(col) if isinstance(col, str) else [a(x) for x in col]
        a(f"s_mov_b32 s{S_BMAT+b}, {mat}"); a(f"s_mov_b32 s{S_BTYP+b}, {typ}"); a(f"s_mov_b32 s{S_BIDX+b}, s{idx}")
    a(f"s_cmp_lt_u32 s{S_C}, 8"); a(f"s_cbranch_scc1 {lx}")
    a(f"s_cmp_lt_u32 s{S_C}, 14"); a(f"s_cbranch_scc1 {ly}")
    a(f"s_sub_u32 s{S_T0}, s{S_C}, 8")
    blk(0, f"s_lshl_b32 s{S_BCOL}, s{S_T0}, 7", 0, T_Q, S_T0)
    a(f"s_sub_u32 s{S_T0}, s{S_C}, 14"); a(f"s_lshl_b32 s{S_T0}, s{S_T0}, 1"); a(f"s_add_u32 s{S_T0}, s{S_T0}, 6")
    blk(1, f"s_lshl_b32 s{S_BCOL+1}, s{S_T0}, 7", 1, T_G1, S_T0)
    a(f"s_add_u32 s{S_T0}, s{S_T0}, 1")
    blk(2, f"s_lshl_b32 s{S_BCOL+2}, s{S_T0}, 7", 1, T_G1, S_T0)
    blk(3, f"s_mov_b32 s{S_BCOL+3}, 0", 0, T_Q, S_T0)
    a(f"s_mov_b32 s{S_NB}, 3"); a(f"s_branch {ld}")
    a.label(ly)
    blk(0, [f"s_lshl_b32 s{S_BCOL}, s{S_C}, 7", f"s_add_u32 s{S_BCOL}, s{S_BCOL}, 1792"], 1, T_G2, S_C)
    a(f"s_sub_u32 s{S_T0}, s{S_C}, 8")
    blk(1, f"s_lshl_b32 s{S_BCOL+1}, s{S_T0}, 7", 0, T_Q, S_T0)
    blk(2, f"s_lshl_b32 s{S_BCOL+2}, s{S_T0}, 7", 1, T_G1, S_T0)
    blk(3, f"s_mov_b32 s{S_BCOL+3}, 0", 0, T_Q, S_T0)
    a(f"s_mov_b32 s{S_NB}, 3"); a(f"s_branch {ld}")
    a.label(lx)
    blk(0, [f"s_lshl_b32 s{S_BCOL}, s{S_C}, 7", f"s_add_u32 s{S_BCOL}, s{S_BCOL}, 1792"], 1, T_G2, S_C)
    a(f"s_lshl_b32 s{S_T0}, s{S_C}, 7")
    blk(1, f"s_add_u32 s{S_BCOL+1}, s{S_T0}, 1024", 0, T_K, S_C)
    blk(2, f"s_add_u32 s{S_BCOL+2}, s{S_T0}, 2048", 0, T_V, S_C)
    a(f"s_lshr_b32 s{S_T0}, s{S_C}, 1"); a(f"s_add_u32 s{S_T0}, s{S_T0}, 10")
    blk(3, f"s_lshl_b32 s{S_BCOL+3}, s{S_T0}, 7", 1, T_G1, S_T0)
    a(f"s_sub_u32 s{S_NB}, 4, s{S_E}")
    a.label(ld)
    a("s_waitcnt lgkmcnt(0)")
    a(f"s_load_dword s{S_TAG}, s[{SRD_WS}:{SRD_WS+1}], {WS_EPOCH}")
    a(f"s_and_b32 s{SRD_X+1}, s{SRD_X+1}, 0xffff"); a(f"s_mov_b32 s{SRD_X+2}, {2048*512*2}"); a(f"s_mov_b32 s{SRD_X+3}, 0x20000")
    a(f"s_mov_b32 s{SRD_T}, s{SRD_WS}"); a(f"s_and_b32 s{SRD_T+1}, s{SRD_WS+1}, 0xffff")

def finish_ws_srd(a):
    a("s_waitcnt lgkmcnt(0)")
    a(f"s_and_b32 s{SRD_WS+1}, s{SRD_WS+1}, 0xffff"); a(f"s_mov_b32 s{SRD_WS+2}, {WS_BYTES}"); a(f"s_mov_b32 s{SRD_WS+3}, 0x20000")
    a(f"s_add_u32 s{S_TAG}, s{S_TAG}, 1")

def set_wsrd_regs(a, mat, col):
    a(f"s_cmp_eq_u32 s{mat}, 0")
    a(f"s_cselect_b32 s{SRD_W}, s{P_WQKV}, s{P_WIN}")
    a(f"s_cselect_b32 s{SRD_W+1}, s{P_WQKV+1}, s{P_WIN+1}")
    a(f"s_cselect_b32 s{SRD_W+2}, s{S_SZQ}, s{S_SZI}")
    a(f"s_mov_b32 s{SRD_W+3}, 0x20000")
    a("s_cselect_b64 vcc, -1, 0")
    a(f"v_cndmask_b32 v{V_WD}, v{V_WDI}, v{V_WDQ}, vcc")
    a(f"s_lshl_b32 s{S_WSTR}, s{mat}, 9"); a(f"s_add_u32 s{S_WSTR}, s{S_WSTR}, 3072")
    a(f"s_lshl_b32 s{S_W64}, s{S_WSTR}, 6")
    a(f"s_mul_i32 s{S_WBASE}, s{S_WSTR}, s{S_WAVE}"); a(f"s_lshl_b32 s{S_WBASE}, s{S_WBASE}, 3")
    a(f"s_add_u32 s{S_WBASE}, s{S_WBASE}, s{col}")
def set_wsrd(a, b): set_wsrd_regs(a, S_BMAT+b, S_BCOL+b)

def w_dma(a, slab, slot):
    a(f"s_mul_i32 s{S_T0}, s{S_ROTK+slab}, s{S_W64}")
    a(f"s_add_u32 m0, s{S_M0W}, {slot*SLOT}")
    a(f"s_add_u32 s{S_T0}, s{S_T0}, s{S_WBASE}")
    a(f"buffer_load_dwordx4 v{V_WD}, s[{SRD_W}:{SRD_W+3}], s{S_T0} offen lds")
def x_dma(a, slab, slot):
    a(f"s_lshl_b32 s{S_T0}, s{S_ROTK+slab}, 7")
    a(f"s_add_u32 m0, s{S_M0X}, {slot*SLOT}")
    a(f"s_add_u32 s{S_T0}, s{S_T0}, s{S_XB}")
    a(f"buffer_load_dwordx4 v{V_XDE}, s[{SRD_X}:{SRD_X+3}], s{S_T0} offen lds")
    a(f"s_add_u32 m0, s{S_M0X}, {slot*SLOT+1024}")
    a(f"s_add_u32 s{S_T0}, s{S_T0}, 8192")
    a(f"buffer_load_dwordx4 v{V_XDO}, s[{SRD_X}:{SRD_X+3}], s{S_T0} offen lds")

def issue_initial(a, vm):
    T = TMP
    a(f"s_lshr_b32 s{S_T1}, s{S_WG}, 2")
    a(f"s_cmp_ge_u32 s{S_T1}, 24"); a(f"s_cselect_b32 s{S_T2}, 1, 0")
    a(f"s_mul_i32 s{S_T3}, s{S_T2}, 24"); a(f"s_sub_u32 s{S_T1}, s{S_T1}, s{S_T3}"); a(f"s_lshl_b32 s{S_T1}, s{S_T1}, 7")
    set_wsrd_regs(a, S_T2, S_T1)
    a(f"s_and_b32 s{S_T0}, s{S_WG}, 3"); a(f"s_lshl_b32 s{S_T0}, s{S_T0}, 7"); a(f"s_lshl_b32 s{S_T2}, s{S_WAVE}, 4"); a(f"s_add_u32 s{S_T0}, s{S_T0}, s{S_T2}")
    a(f"s_mul_i32 s{S_T0}, s{S_T0}, s{S_WSTR}"); a(f"s_add_u32 s{S_T0}, s{S_T0}, s{S_T1}")
    a(f"s_cmp_ge_u32 s{S_WG}, 208"); a(f"s_cselect_b32 s{S_T0}, {OOB}, s{S_T0}")
    a(f"s_add_u32 m0, s{S_M0X}, {L_CSU}")
    a(f"s_lshl_b32 s{S_T2}, s{S_WSTR}, 3")
    a(f"buffer_load_dwordx4 v{V_WD}, s[{SRD_W}:{SRD_W+3}], s{S_T0} offen lds"); vm.issue("cu")
    a(f"s_add_u32 m0, s{S_M0X}, {L_CSU+1024}")
    a(f"s_add_u32 s{S_T0}, s{S_T0}, s{S_T2}")
    a(f"buffer_load_dwordx4 v{V_WD}, s[{SRD_W}:{SRD_W+3}], s{S_T0} offen lds"); vm.issue("cu")
    a(f"s_lshl_b32 s{S_T0}, s{S_WG}, 3"); a(f"s_add_u32 s{S_T0}, s{S_T0}, s{S_WAVE}"); a(f"s_lshl_b32 s{S_T0}, s{S_T0}, 10")
    a(f"buffer_load_dwordx4 v[{PP}:{PP+3}], v{V_L16}, s[{SRD_X}:{SRD_X+3}], s{S_T0} offen"); vm.issue("xr")
    set_wsrd(a, 0)
    for sl in range(6):
        x_dma(a, sl, 2*sl); vm.issue(f"x{sl}", 2)
        if sl < 5: w_dma(a, sl, 12+sl); vm.issue(f"w{sl}")

def issue_clears(a, vm):
    T = TMP
    for d in range(4): a(f"v_mov_b32 v{T+d}, -1")
    a(f"s_lshl_b32 s{S_T0}, s{S_C}, 2"); a(f"s_lshr_b32 s{S_T1}, s{S_WAVE}, 1"); a(f"s_add_u32 s{S_T0}, s{S_T0}, s{S_T1}"); a(f"s_lshl_b32 s{S_T0}, s{S_T0}, 6")
    a(f"s_lshl_b32 s{S_T1}, s{S_R}, 2"); a(f"s_add_u32 s{S_T0}, s{S_T0}, s{S_T1}"); a(f"s_and_b32 s{S_T1}, s{S_WAVE}, 1"); a(f"s_lshl_b32 s{S_T1}, s{S_T1}, 1")
    a(f"s_add_u32 s{S_T0}, s{S_T0}, s{S_T1}"); a(f"s_lshl_b32 s{S_T0}, s{S_T0}, 10"); a(f"s_add_u32 s{S_T0}, s{S_T0}, {WS_Z2N}")
    a(f"s_cmp_ge_u32 s{S_C}, 14"); a(f"s_cselect_b32 s{S_T0}, {OOB}, s{S_T0}")
    a(f"buffer_store_dwordx4 v[{T}:{T+3}], v{V_L16}, {WS}, s{S_T0} offen sc1"); a(f"buffer_store_dwordx4 v[{T}:{T+3}], v{V_L16}, {WS}, s{S_T0} offen offset:1024 sc1")
    a(f"s_lshl_b32 s{S_T0}, s{S_R}, 4"); a(f"s_add_u32 s{S_T0}, s{S_T0}, s{S_C}"); a(f"s_lshl_b32 s{S_T0}, s{S_T0}, 10"); a(f"s_add_u32 s{S_T0}, s{S_T0}, {WS_STATS}")
    a(f"s_cmp_lg_u32 s{S_WAVE}, 0"); a(f"s_cselect_b32 s{S_T0}, {OOB}, s{S_T0}")
    a(f"buffer_store_dwordx4 v[{T}:{T+3}], v{V_L16}, {WS}, s{S_T0} offen sc1")
    a(f"s_mul_i32 s{S_T0}, s{S_BI}, 112"); a(f"s_mul_i32 s{S_T1}, s{S_BJ}, 7"); a(f"s_add_u32 s{S_T0}, s{S_T0}, s{S_T1}"); a(f"s_add_u32 s{S_T0}, s{S_T0}, s{S_WAVE}")
    a(f"s_lshl_b32 s{S_T0}, s{S_T0}, 10"); a(f"s_add_u32 s{S_T0}, s{S_T0}, {WS_U}")
    a(f"s_add_u32 s{S_T1}, s{S_T0}, {56*1024}")
    a(f"s_lshl_b32 s{S_T2}, s{S_WG}, 10"); a(f"s_add_u32 s{S_T2}, s{S_T2}, {WS_KVT}")
    a(f"s_cmp_ge_u32 s{S_WG}, 32"); a(f"s_cselect_b32 s{S_T2}, {OOB}, s{S_T2}")
    a(f"s_cmp_eq_u32 s{S_WAVE}, 7"); a(f"s_cselect_b32 s{S_T0}, s{S_T2}, s{S_T0}"); a(f"s_cselect_b32 s{S_T1}, {OOB}, s{S_T1}")
    a(f"buffer_store_dwordx4 v[{T}:{T+3}], v{V_L16}, {WS}, s{S_T0} offen sc1"); a(f"buffer_store_dwordx4 v[{T}:{T+3}], v{V_L16}, {WS}, s{S_T1} offen sc1")
    vm.issue("clr", 5)

def setup_lane_consts(a):
    L = V_LANE; T = TMP + 4
    a(f"v_and_b32 v{T}, 31, v{L}"); a(f"v_lshrrev_b32 v{T+1}, 5, v{L}")
    a(f"v_lshrrev_b32 v{T+2}, 1, v{T}"); a(f"v_and_b32 v{T+2}, 7, v{T+2}")
    a(f"v_xor_b32 v{T+3}, v{T+1}, v{T+2}"); a(f"v_lshlrev_b32 v{T+3}, 4, v{T+3}")
    a(f"s_lshl_b32 s{S_T0}, s{S_P}, 12")
    a(f"v_lshl_add_u32 v{T+4}, v{T}, 7, v{T+3}"); a(f"v_add_u32 v{V_XA}, s{S_T0}, v{T+4}")
    for kk in range(1, 4): a(f"v_xor_b32 v{V_XA+kk}, {kk<<5}, v{V_XA}")
    a(f"v_lshrrev_b32 v{T}, 2, v{L}"); a(f"v_and_b32 v{T}, 3, v{T}")
    a(f"v_lshrrev_b32 v{T+1}, 5, v{L}"); a(f"v_lshl_add_u32 v{T+2}, v{T+1}, 3, v{T}")
    a(f"v_lshrrev_b32 v{T+3}, 4, v{L}"); a(f"v_and_b32 v{T+3}, 1, v{T+3}")
    a(f"v_lshrrev_b32 v{T+4}, 1, v{L}"); a(f"v_and_b32 v{T+4}, 1, v{T+4}"); a(f"v_lshl_add_u32 v{T+4}, v{T+3}, 1, v{T+4}")
    a(f"v_lshrrev_b32 v{T+5}, 1, v{T}"); a(f"v_lshlrev_b32 v{T+5}, 2, v{T+5}"); a(f"v_xor_b32 v{T+4}, v{T+4}, v{T+5}")
    a(f"v_lshlrev_b32 v{T+4}, 4, v{T+4}"); a(f"v_lshl_add_u32 v{T+4}, v{T+2}, 7, v{T+4}")
    a(f"v_and_b32 v{T+5}, 1, v{L}"); a(f"v_lshl_add_u32 v{V_WA}, v{T+5}, 3, v{T+4}")
    a(f"v_lshrrev_b32 v{T}, 4, v{L}"); a(f"v_and_b32 v{T+1}, 1, v{T}"); a(f"v_lshlrev_b32 v{T+1}, 1, v{T+1}")
    a(f"v_lshrrev_b32 v{T}, 1, v{T}"); a(f"v_or_b32 v{T}, v{T}, v{T+1}")
    a(f"v_and_b32 v{T+1}, 15, v{L}"); a(f"v_lshl_add_u32 v{T}, v{T}, 4, v{T+1}"); a(f"v_lshlrev_b32 v{V_Z1O}, 4, v{T}")
    a(f"v_lshrrev_b32 v{T}, 4, v{L}"); a(f"v_and_b32 v{T}, 1, v{T}"); a(f"v_lshlrev_b32 v{T}, 16, v{T}")
    a(f"v_lshrrev_b32 v{T+1}, 5, v{L}"); a(f"v_and_b32 v{T+2}, 15, v{L}"); a(f"v_lshl_add_u32 v{T+1}, v{T+1}, 4, v{T+2}")
    a(f"v_lshl_add_u32 v{V_Z2O}, v{T+1}, 4, v{T}")
    a(f"v_and_b32 v{T}, 15, v{L}"); a(f"v_lshrrev_b32 v{T+1}, 2, v{T}"); a(f"v_and_b32 v{T+1}, 1, v{T+1}"); a(f"v_lshrrev_b32 v{T+2}, 5, v{L}")
    a(f"v_and_b32 v{T+3}, 3, v{T}"); a(f"v_lshrrev_b32 v{T+4}, 3, v{T}"); a(f"v_lshl_add_u32 v{T+3}, v{T+4}, 2, v{T+3}")
    a(f"v_and_b32 v{T+4}, 1, v{T+3}"); a(f"v_lshlrev_b32 v{T+4}, 4, v{T+4}")
    a(f"v_mov_b32 v{T+5}, 0x3f80"); a(f"v_lshlrev_b32 v{T+5}, v{T+4}, v{T+5}"); a(f"v_lshrrev_b32 v{T+3}, 1, v{T+3}")
    a(f"v_cmp_eq_u32 vcc, v{T+1}, v{T+2}"); a(f"v_cndmask_b32 v{T+5}, 0, v{T+5}, vcc")
    a(f"v_lshrrev_b32 v{T+6}, 4, v{L}"); a(f"v_and_b32 v{T+6}, 1, v{T+6}"); a(f"v_lshl_add_u32 v{T+6}, v{T+6}, 2, v{T+3}")
    for d in range(8):
        a(f"v_cmp_eq_u32 vcc, {d}, v{T+6}"); a(f"v_cndmask_b32 v{I0+d}, 0, v{T+5}, vcc")
    a(f"v_mov_b32 v{XAUG+2}, 0"); a(f"v_mov_b32 v{XAUG+3}, 0"); a(f"v_mov_b32 v{WAUG+2}, 0"); a(f"v_mov_b32 v{WAUG+3}, 0")

def dpp_sum64(a, regs):
    for sh in (1, 2, 4, 8):
        for r in regs: a(f"v_add_f32_dpp v{r}, v{r}, v{r} row_shr:{sh} row_mask:0xf bank_mask:0xf bound_ctrl:0")
    for r in regs: a(f"v_add_f32_dpp v{r}, v{r}, v{r} row_bcast:15 row_mask:0xa bank_mask:0xf")
    for r in regs: a(f"v_add_f32_dpp v{r}, v{r}, v{r} row_bcast:31 row_mask:0xc bank_mask:0xf")

def phase0(a, vm):
    T = TMP
    vm.wait(a, {"cu", "xr"})
    S, Q = T+4, T+5
    a(f"v_mov_b32 v{S}, 0"); a(f"v_mov_b32 v{Q}, 0")
    for d in range(4):
        a(f"v_dot2c_f32_bf16 v{S}, s{S_ONES}, v{PP+d}"); a(f"v_dot2c_f32_bf16 v{Q}, v{PP+d}, v{PP+d}")
    a("s_barrier")
    a(f"s_lshl_b32 s{S_T0}, s{S_E}, 6"); a(f"v_xor_b32 v{T+6}, s{S_T0}, v{V_WA}")
    a(f"s_lshl_b32 s{S_T0}, s{S_P}, 12"); a(f"s_add_u32 s{S_T0}, s{S_T0}, {L_CSU}"); a(f"v_add_u32 v{T+6}, s{S_T0}, v{T+6}")
    for k in range(2):
        a(f"ds_read_b64_tr_b16 v[{WF+4*k}:{WF+4*k+1}], v{T+6} offset:{2048*k}")
        a(f"ds_read_b64_tr_b16 v[{WF+4*k+2}:{WF+4*k+3}], v{T+6} offset:{2048*k+512}")
    dpp_sum64(a, [S, Q])
    a(f"v_mul_f32 v{S}, {hexf(1/512)}, v{S}"); a(f"v_mul_f32 v{Q}, {hexf(1/512)}, v{Q}")
    a(f"v_fma_f32 v{Q}, -v{S}, v{S}, v{Q}"); a(f"v_max_f32 v{Q}, 0, v{Q}"); a(f"v_add_f32 v{Q}, {hexf(1e-5)}, v{Q}")
    a(f"v_rsq_f32 v{T+9}, v{Q}")
    a(f"v_sub_f32 v{T+8}, 0, v{S}")
    a(f"v_mov_b32 v{T+10}, s{S_TAG}"); a(f"v_mov_b32 v{T+11}, s{S_TAG}")
    a(f"s_lshl_b32 s{S_T0}, s{S_WG}, 3"); a(f"s_add_u32 s{S_T0}, s{S_T0}, s{S_WAVE}"); a(f"s_lshl_b32 s{S_T0}, s{S_T0}, 4"); a(f"s_add_u32 s{S_T0}, s{S_T0}, {WS_XS}")
    a(f"v_mov_b32 v{T+7}, 0")
    a(f"v_cmp_eq_u32 vcc, 63, v{V_LANE}"); a(f"s_and_saveexec_b64 s[{S_SAVE}:{S_SAVE+1}], vcc")
    a(f"buffer_store_dwordx4 v[{T+8}:{T+11}], v{T+7}, {WS}, s{S_T0} offen sc1"); vm.issue("xs")
    a(f"s_mov_b64 exec, s[{S_SAVE}:{S_SAVE+1}]")
    a(f"v_mov_b32 v{S}, 0"); a(f"v_mov_b32 v{Q}, 0")
    a("s_waitcnt lgkmcnt(0)")
    for d in range(8): a(f"v_dot2c_f32_bf16 v{S+(d&1)}, s{S_ONES}, v{WF+d}")
    a(f"v_add_f32 v{S}, v{S}, v{Q}")
    a(f"v_and_b32 v{T+6}, 31, v{V_LANE}"); a(f"v_lshlrev_b32 v{T+6}, 5, v{T+6}")
    a(f"s_lshl_b32 s{S_T0}, s{S_E}, 10"); a(f"s_add_u32 s{S_T0}, s{S_T0}, {L_CSB}"); a(f"v_add_u32 v{V_M0}, s{S_T0}, v{T+6}")
    a(f"v_lshrrev_b32 v{T+7}, 5, v{V_LANE}"); a(f"v_lshl_add_u32 v{T+6}, v{T+7}, 2, v{V_M0}")
    a(f"s_lshl_b32 s{S_T0}, s{S_P}, 3"); a(f"v_add_u32 v{T+6}, s{S_T0}, v{T+6}")
    a(f"ds_write_b32 v{T+6}, v{S}")
    a("s_waitcnt lgkmcnt(0)")
    a("s_barrier")
    a(f"ds_read_b128 v[{WF}:{WF+3}], v{V_M0}"); a(f"ds_read_b128 v[{WF+4}:{WF+7}], v{V_M0} offset:16")
    a(f"s_lshl_b32 s{S_T0}, s{S_WG}, 9"); a(f"s_lshl_b32 s{S_T1}, s{S_E}, 8"); a(f"s_add_u32 s{S_T0}, s{S_T0}, s{S_T1}"); a(f"s_add_u32 s{S_T0}, s{S_T0}, {WS_CSG}")
    a(f"s_cmp_ge_u32 s{S_WG}, 208"); a(f"s_cselect_b32 s{S_T0}, {OOB}, s{S_T0}")
    a(f"s_cmp_lg_u32 s{S_P}, 0"); a(f"s_cselect_b32 s{S_T0}, {OOB}, s{S_T0}")
    a(f"v_and_b32 v{T+6}, 31, v{V_LANE}"); a(f"v_lshlrev_b32 v{T+6}, 3, v{T+6}")
    a("s_waitcnt lgkmcnt(0)")
    a(f"v_add_f32 v{WF}, v{WF}, v{WF+1}"); a(f"v_add_f32 v{WF+2}, v{WF+2}, v{WF+3}"); a(f"v_add_f32 v{WF+4}, v{WF+4}, v{WF+5}"); a(f"v_add_f32 v{WF+6}, v{WF+6}, v{WF+7}")
    a(f"v_add_f32 v{WF}, v{WF}, v{WF+2}"); a(f"v_add_f32 v{WF+4}, v{WF+4}, v{WF+6}"); a(f"v_add_f32 v{WF}, v{WF}, v{WF+4}")
    a(f"v_mov_b32 v{WF+1}, s{S_TAG}")
    a(f"v_cmp_gt_u32 vcc, 32, v{V_LANE}"); a(f"s_and_saveexec_b64 s[{S_SAVE}:{S_SAVE+1}], vcc")
    a(f"buffer_store_dwordx2 v[{WF}:{WF+1}], v{T+6}, {WS}, s{S_T0} offen sc1"); vm.issue("cs")
    a(f"s_mov_b64 exec, s[{S_SAVE}:{S_SAVE+1}]")

def spin_check(a, out):
    a(f"s_add_u32 s{S_SPIN}, s{S_SPIN}, 1"); a(f"s_cmp_gt_u32 s{S_SPIN}, 200000"); a(f"s_cbranch_scc1 {out}")

GX = PK
GC = RET
def issue_granule_loads(a, vm=None):
    T = PP
    a(f"v_and_b32 v{T}, 31, v{V_LANE}"); a(f"v_lshlrev_b32 v{T+1}, 4, v{T}")
    a(f"s_lshl_b32 s{S_T0}, s{S_B32}, 9"); a(f"s_add_u32 s{S_T0}, s{S_T0}, {WS_XS}")
    a(f"buffer_load_dwordx4 v[{GX}:{GX+3}], v{T+1}, {WS}, s{S_T0} offen sc1")
    a(f"v_lshrrev_b32 v{T+2}, 5, v{V_LANE}"); a(f"v_lshlrev_b32 v{T+2}, 10, v{T+2}"); a(f"v_lshl_add_u32 v{T+2}, v{T}, 3, v{T+2}")
    for b in range(4):
        a(f"s_mul_i32 s{S_T0}, s{S_BMAT+b}, 24"); a(f"s_lshr_b32 s{S_T1}, s{S_BCOL+b}, 7"); a(f"s_add_u32 s{S_T0}, s{S_T0}, s{S_T1}")
        a(f"s_lshl_b32 s{S_T0}, s{S_T0}, 11")
        if b < 3: a(f"s_lshl_b32 s{S_T1}, s{S_E}, 8")
        else: a(f"s_and_b32 s{S_T1}, s{S_C}, 1"); a(f"s_lshl_b32 s{S_T1}, s{S_T1}, 8")
        a(f"s_add_u32 s{S_T0}, s{S_T0}, s{S_T1}"); a(f"s_add_u32 s{S_T0}, s{S_T0}, {WS_CSG}")
        for k in range(2):
            a(f"buffer_load_dwordx2 v[{GC+4*b+2*k}:{GC+4*b+2*k+1}], v{T+2}, {WS}, s{S_T0} offen offset:{512*k} sc1")
    if vm: vm.issue("gr", 9)

def consume_granules(a):
    T = PP
    lp, lo = "L_gr_chk", "L_gr_ok"
    a(f"s_mov_b32 s{S_SPIN}, 0")
    a.label(lp)
    a(f"v_xor_b32 v{T}, s{S_TAG}, v{GX+2}"); a(f"v_xor_b32 v{T+1}, s{S_TAG}, v{GX+3}"); a(f"v_or_b32 v{T}, v{T}, v{T+1}")
    for q in range(8):
        a(f"v_xor_b32 v{T+1}, s{S_TAG}, v{GC+2*q+1}"); a(f"v_or_b32 v{T}, v{T}, v{T+1}")
    a(f"v_cmp_ne_u32 vcc, 0, v{T}")
    a(f"s_cbranch_vccz {lo}")
    spin_check(a, lo)
    issue_granule_loads(a)
    a("s_waitcnt vmcnt(0)")
    a(f"s_branch {lp}")
    a.label(lo)
    a(f"v_mov_b32 v{C_R}, v{GX+1}")
    a(f"v_rcp_f32 v{C_S}, v{GX+1}")
    a(f"v_mul_f32 v{C_B}, {hexf(K1)}, v{C_R}")
    a(f"v_mul_f32 v{T}, v{C_R}, v{C_R}"); a(f"v_mul_f32 v{T}, v{T}, v{C_R}"); a(f"v_mul_f32 v{C_A}, {hexf(K2)}, v{T}")
    a(f"v_mul_f32 v{C_RL}, {hexf(LOG2E)}, v{C_R}")
    a(f"v_cmp_gt_u32 vcc, 32, v{V_LANE}"); a(f"v_cndmask_b32 v{T}, 0, v{GX}, vcc")
    a(f"v_cvt_pk_bf16_f32 v{T+1}, v{T}, v{T}"); a(f"v_lshlrev_b32 v{T+1}, 16, v{T+1}"); a(f"v_sub_f32 v{T+2}, v{T}, v{T+1}")
    a(f"v_cvt_pk_bf16_f32 v{XAUG}, v{T}, v{T+2}"); a(f"v_cvt_pk_bf16_f32 v{XAUG+1}, v{T}, 0")
    for b in range(4):
        a(f"v_add_f32 v{T}, v{GC+4*b}, v{GC+4*b+2}"); a(f"v_mov_b32 v{T+1}, v{T}")
        a(f"v_permlane32_swap_b32 v{T}, v{T+1}"); a(f"v_add_f32 v{T}, v{T}, v{T+1}")
        a(f"v_cvt_pk_bf16_f32 v{CSA+2*b}, v{T}, v{T}"); a(f"v_lshlrev_b32 v{T+1}, 16, v{CSA+2*b}"); a(f"v_sub_f32 v{T+1}, v{T}, v{T+1}")
        a(f"v_cvt_pk_bf16_f32 v{CSA+2*b+1}, v{T+1}, 0")

def aug_mfma(a):
    a(f"v_mfma_f32_32x32x16_bf16 v[{ACC}:{ACC+15}], v[{WAUG}:{WAUG+3}], v[{XAUG}:{XAUG+3}], v[{ACC}:{ACC+15}]")

def pass1(a, vm):
    a(f"s_lshl_b32 s{S_T0}, s{S_E}, 6")
    a(f"v_xor_b32 v{V_WAA}, s{S_T0}, v{V_WA}"); a(f"v_add_u32 v{V_WAA}, {12*SLOT}, v{V_WAA}")
    xslot = [0, 2, 4, 6, 8, 10, 0, 2]
    wslot = [12, 13, 14, 15, 16, 17, 12, 13]
    def compute(st):
        wb = WF + 16*(st & 1)
        for kk in range(4):
            ks = 4*st + kk
            c = "0" if ks == 0 else f"v[{ACC}:{ACC+15}]"
            a(f"v_mfma_f32_32x32x16_bf16 v[{ACC}:{ACC+15}], v[{wb+4*kk}:{wb+4*kk+3}], v[{XF+4*ks}:{XF+4*ks+3}], {c}")
    for st in range(8):
        vm.wait(a, {f"x{st}", f"w{st}"}, "lgkmcnt(0)")
        a("s_barrier")
        if st in (0, 4): stamp(a, {0: 2, 4: 3}[st])
        if st > 0:
            d = (xslot[st] - xslot[st-1]) * SLOT
            for kk in range(4):
                if d >= 0: a(f"v_add_u32 v{V_XA+kk}, {d}, v{V_XA+kk}")
                else: a(f"v_subrev_u32 v{V_XA+kk}, {-d}, v{V_XA+kk}")
        wb = WF + 16*(st & 1)
        for kk in range(4):
            ks = 4*st + kk
            a(f"ds_read_b128 v[{XF+4*ks}:{XF+4*ks+3}], v{V_XA+kk}")
            off = (wslot[st]-12)*SLOT + kk*2048
            a(f"ds_read_b64_tr_b16 v[{wb+4*kk}:{wb+4*kk+1}], v{V_WAA} offset:{off}")
            a(f"ds_read_b64_tr_b16 v[{wb+4*kk+2}:{wb+4*kk+3}], v{V_WAA} offset:{off+512}")
        if st > 0: compute(st-1)
        if st == 0: w_dma(a, 5, 17); vm.issue("w5")
        if st == 1: x_dma(a, 6, 0); vm.issue("x6", 2); w_dma(a, 6, 12); vm.issue("w6")
        if st == 2: x_dma(a, 7, 2); vm.issue("x7", 2); w_dma(a, 7, 13); vm.issue("w7")
        if st == 3: set_wsrd(a, 1)
        if 3 <= st <= 6:
            m = 2*(st-3)
            w_dma(a, m, 4+m); w_dma(a, m+1, 5+m); vm.issue("b1", 2)
        if st == 4: issue_granule_loads(a, vm)
        if st == 6:
            a(f"s_lshr_b32 s{S_T0}, s{S_WG}, 2"); a(f"s_lshl_b32 s{S_T0}, s{S_T0}, 7"); a(f"s_and_b32 s{S_T1}, s{S_WG}, 3"); a(f"s_lshl_b32 s{S_T1}, s{S_T1}, 2")
            a(f"s_add_u32 s{S_T0}, s{S_T0}, s{S_T1}"); a(f"s_add_u32 s{S_T0}, s{S_T0}, {WS_FINIT}")
            a(f"s_cmp_lg_u32 s{S_WAVE}, 0"); a(f"s_cselect_b32 s{S_T0}, {OOB}, s{S_T0}")
            a(f"v_mov_b32 v{V_M1}, s{S_TAG}"); a(f"v_mov_b32 v{V_M2}, 0")
            a(f"s_mov_b64 s[{S_SAVE}:{S_SAVE+1}], exec"); a("s_mov_b64 exec, 1")
            a(f"buffer_store_dword v{V_M1}, v{V_M2}, {WS}, s{S_T0} offen sc1"); vm.issue("fl")
            a(f"s_mov_b64 exec, s[{S_SAVE}:{S_SAVE+1}]")
        if st == 7:
            set_wsrd(a, 2)
            for m in range(4): w_dma(a, m, 14+m)
            vm.issue("b2a", 4)
    vm.wait(a, {"gr"}, "lgkmcnt(0)")
    compute(7)
    consume_granules(a)
    a(f"v_mov_b32 v{WAUG}, v{CSA}"); a(f"v_mov_b32 v{WAUG+1}, v{CSA+1}")
    aug_mfma(a)
    a("s_barrier")

def m_phase(a):
    PD = 6
    a(f"s_lshl_b32 s{S_T0}, s{S_ECUR}, 6")
    a(f"v_xor_b32 v{V_WAA}, s{S_T0}, v{V_WA}")
    a(f"v_add_u32 v{V_WAB}, s{S_LB}, v{V_WAA}"); a(f"v_add_u32 v{V_WAA}, s{S_LA}, v{V_WAA}")
    def rd(ks):
        base = V_WAA if ks < 16 else V_WAB
        off = ((ks >> 2) & 3) * SLOT + (ks & 3) * 2048
        b = WF + 4*(ks & 7)
        a(f"ds_read_b64_tr_b16 v[{b}:{b+1}], v{base} offset:{off}")
        a(f"ds_read_b64_tr_b16 v[{b+2}:{b+3}], v{base} offset:{off+512}")
    for ks in range(PD): rd(ks)
    a(f"s_cmp_eq_u32 s{S_CUR}, 2"); a("s_cselect_b64 vcc, -1, 0")
    a(f"v_cndmask_b32 v{WAUG}, v{CSA+2}, v{CSA+4}, vcc"); a(f"v_cndmask_b32 v{WAUG+1}, v{CSA+3}, v{CSA+5}, vcc")
    a(f"s_cmp_eq_u32 s{S_CUR}, 3"); a("s_cselect_b64 vcc, -1, 0")
    a(f"v_cndmask_b32 v{WAUG}, v{WAUG}, v{CSA+6}, vcc"); a(f"v_cndmask_b32 v{WAUG+1}, v{WAUG+1}, v{CSA+7}, vcc")
    for ks in range(32):
        if ks + PD < 32:
            rd(ks+PD); a(f"s_waitcnt lgkmcnt({2*PD})")
        else:
            a(f"s_waitcnt lgkmcnt({2*(31-ks)})")
        b = WF + 4*(ks & 7)
        c = "0" if ks == 0 else f"v[{ACC}:{ACC+15}]"
        a(f"v_mfma_f32_32x32x16_bf16 v[{ACC}:{ACC+15}], v[{b}:{b+3}], v[{XF+4*ks}:{XF+4*ks+3}], {c}")
    aug_mfma(a)

def gelu(a, dst):
    T = TMP
    for g in range(4):
        r = [ACC+4*g+i for i in range(4)]
        t = [T+4*(g&1)+i for i in range(4)]
        u = [T+8+4*(g&1)+i for i in range(4)]
        for i in range(4): a(f"v_mul_f32 v{t[i]}, v{r[i]}, v{r[i]}")
        for i in range(4): a(f"v_fma_f32 v{t[i]}, v{t[i]}, v{C_A}, v{C_B}")
        for i in range(4): a(f"v_mul_f32 v{t[i]}, v{r[i]}, v{t[i]}")
        for i in range(4): a(f"v_exp_f32 v{u[i]}, v{t[i]}")
        for i in range(4): a(f"v_fma_f32 v{u[i]}, v{u[i]}, v{C_S}, v{C_S}")
        for i in range(4): a(f"v_rcp_f32 v{u[i]}, v{u[i]}")
        for i in range(4): a(f"v_mul_f32 v{dst+4*g+i}, v{r[i]}, v{u[i]}")
def phi(a):
    T = TMP
    for g in range(4):
        r = [ACC+4*g+i for i in range(4)]
        t = [T+4*(g&1)+i for i in range(4)]
        for i in range(4): a(f"v_min_f32 v{t[i]}, 0, v{r[i]}")
        for i in range(4): a(f"v_mul_f32 v{t[i]}, v{t[i]}, v{C_RL}")
        for i in range(4): a(f"v_exp_f32 v{t[i]}, v{t[i]}")
        for i in range(4): a(f"v_max_f32 v{r[i]}, 0, v{r[i]}")
        for i in range(4): a(f"v_add_f32 v{t[i]}, s{S_EPS6}, v{t[i]}")
        for i in range(4): a(f"v_fma_f32 v{r[i]}, v{r[i]}, v{C_R}, v{t[i]}")
def pack(a, src, dst):
    for q in range(8): a(f"v_cvt_pk_bf16_f32 v{dst+q}, v{src+2*q}, v{src+2*q+1}")
def transpose(a, P, D, R):
    a(f"v_mfma_f32_32x32x16_bf16 v[{D}:{D+15}], v[{P}:{P+3}], v[{I0}:{I0+3}], 0")
    a(f"v_mfma_f32_32x32x16_bf16 v[{D}:{D+15}], v[{P+4}:{P+7}], v[{I1}:{I1+3}], v[{D}:{D+15}]")
    pack(a, D, R)

def e_phase(a, btyp, bidx):
    T = TMP
    lq, lk, lvv, lg2, ldone, lp1 = ["L_e_" + x for x in ("q", "k", "v", "g2", "done", "g2p1")]
    a(f"s_cmp_eq_u32 s{btyp}, {T_V}"); a(f"s_cbranch_scc1 {lvv}")
    a(f"s_cmp_ge_u32 s{btyp}, {T_Q}"); a(f"s_cbranch_scc1 {lq}")
    a(f"s_cmp_eq_u32 s{btyp}, {T_G2}"); a(f"s_cbranch_scc1 {lg2}")
    a(f"s_mul_i32 s{S_T0}, s{S_B32}, 56"); a(f"s_lshl_b32 s{S_T1}, s{bidx}, 2"); a(f"s_add_u32 s{S_T0}, s{S_T0}, s{S_T1}")
    a(f"s_lshl_b32 s{S_T1}, s{S_ECUR}, 1"); a(f"s_add_u32 s{S_T0}, s{S_T0}, s{S_T1}")
    a(f"s_lshl_b32 s{S_T0}, s{S_T0}, 10"); a(f"s_add_u32 s{S_T0}, s{S_T0}, {WS_Z1}")
    gelu(a, ACC)
    pack(a, ACC, PP)
    for gsel in range(2):
        b = PP + 4*gsel
        a(f"v_permlane16_swap_b32 v{b}, v{b+2}"); a(f"v_permlane16_swap_b32 v{b+1}, v{b+3}")
    a(f"buffer_store_dwordx4 v[{PP}:{PP+3}], v{V_Z1O}, {WS}, s{S_T0} offen sc1")
    a(f"buffer_store_dwordx4 v[{PP+4}:{PP+7}], v{V_Z1O}, {WS}, s{S_T0} offen offset:1024 sc1")
    a(f"s_branch {ldone}")
    a.label(lg2)
    gelu(a, RET)
    a(f"v_add_f32 v{T}, v{RET}, v{RET+1}"); a(f"v_mul_f32 v{T+1}, v{RET}, v{RET}")
    a(f"v_add_f32 v{T+2}, v{RET+2}, v{RET+3}"); a(f"v_mul_f32 v{T+3}, v{RET+1}, v{RET+1}")
    for r in range(2, 16, 2):
        a(f"v_fmac_f32 v{T+1}, v{RET+r}, v{RET+r}"); a(f"v_fmac_f32 v{T+3}, v{RET+r+1}, v{RET+r+1}")
        if r >= 4:
            tgt = T if (r & 2) == 0 else T+2
            a(f"v_add_f32 v{T+4}, v{RET+r}, v{RET+r+1}"); a(f"v_add_f32 v{tgt}, v{tgt}, v{T+4}")
    a(f"v_add_f32 v{T}, v{T}, v{T+2}"); a(f"v_add_f32 v{T+1}, v{T+1}, v{T+3}")
    a(f"v_mov_b32 v{T+2}, v{T}"); a(f"v_mov_b32 v{T+3}, v{T+1}")
    a(f"v_permlane32_swap_b32 v{T}, v{T+2}"); a(f"v_permlane32_swap_b32 v{T+1}, v{T+3}")
    a(f"v_add_f32 v{T}, v{T}, v{T+2}"); a(f"v_add_f32 v{T+1}, v{T+1}, v{T+3}")
    a(f"v_and_b32 v{T+4}, 31, v{V_LANE}"); a(f"v_lshlrev_b32 v{T+4}, 3, v{T+4}")
    a(f"s_lshl_b32 s{S_T0}, s{S_P}, 8"); a(f"s_add_u32 s{S_T0}, s{S_T0}, {L_ST2}"); a(f"v_add_u32 v{T+5}, s{S_T0}, v{T+4}")
    a(f"s_cmp_eq_u32 s{S_E}, 1"); a(f"s_cbranch_scc1 {lp1}")
    a(f"ds_write_b64 v{T+5}, v[{T}:{T+1}]")
    a(f"s_branch {ldone}")
    a.label(lp1)
    a(f"ds_read_b64 v[{T+6}:{T+7}], v{T+5}")
    a(f"s_lshl_b32 s{S_T0}, s{S_R}, 4"); a(f"s_add_u32 s{S_T0}, s{S_T0}, s{S_C}"); a(f"s_lshl_b32 s{S_T0}, s{S_T0}, 10")
    a(f"s_lshl_b32 s{S_T1}, s{S_P}, 8"); a(f"s_add_u32 s{S_T0}, s{S_T0}, s{S_T1}"); a(f"s_add_u32 s{S_T0}, s{S_T0}, {WS_STATS}")
    a("s_waitcnt lgkmcnt(0)")
    a(f"v_add_f32 v{T}, v{T}, v{T+6}"); a(f"v_add_f32 v{T+1}, v{T+1}, v{T+7}")
    a(f"v_cmp_gt_u32 vcc, 32, v{V_LANE}"); a(f"s_and_saveexec_b64 s[{S_SAVE}:{S_SAVE+1}], vcc")
    a(f"buffer_store_dwordx2 v[{T}:{T+1}], v{T+4}, {WS}, s{S_T0} offen sc1")
    a(f"s_mov_b64 exec, s[{S_SAVE}:{S_SAVE+1}]")
    a(f"s_branch {ldone}")
    a.label(lq)
    phi(a)
    pack(a, ACC, PP)
    a(f"s_cmp_eq_u32 s{btyp}, {T_K}"); a(f"s_cbranch_scc1 {lk}")
    a(f"s_lshl_b32 s{S_T0}, s{S_B32}, 5"); a(f"s_lshl_b32 s{S_T1}, s{bidx}, 2"); a(f"s_add_u32 s{S_T0}, s{S_T0}, s{S_T1}")
    a(f"s_lshl_b32 s{S_T1}, s{S_ECUR}, 1"); a(f"s_add_u32 s{S_T0}, s{S_T0}, s{S_T1}")
    a(f"s_lshl_b32 s{S_T0}, s{S_T0}, 10"); a(f"s_add_u32 s{S_T0}, s{S_T0}, {WS_PQ}")
    a(f"buffer_store_dwordx4 v[{PP}:{PP+3}], v{V_L16}, {WS}, s{S_T0} offen sc1")
    a(f"buffer_store_dwordx4 v[{PP+4}:{PP+7}], v{V_L16}, {WS}, s{S_T0} offen offset:1024 sc1")
    a(f"s_branch {ldone}")
    a.label(lk)
    transpose(a, PP, WF, PK)
    a(f"v_mov_b32 v{T}, 0"); a(f"v_mov_b32 v{T+1}, 0")
    a(f"s_lshl_b32 s{S_T0}, s{S_WAVE}, 8"); a(f"s_add_u32 s{S_T0}, s{S_T0}, {L_ZW}")
    a(f"v_lshlrev_b32 v{T+2}, 2, v{V_LANE}"); a(f"v_add_u32 v{T+2}, s{S_T0}, v{T+2}")
    for q in range(8): a(f"v_dot2c_f32_bf16 v{T+(q&1)}, s{S_ONES}, v{PK+q}")
    a(f"v_add_f32 v{T}, v{T}, v{T+1}")
    a(f"ds_write_b32 v{T+2}, v{T}")
    a(f"s_branch {ldone}")
    a.label(lvv)
    for r in range(16): a(f"v_mul_f32 v{ACC+r}, v{ACC+r}, v{C_R}")
    pack(a, ACC, PP)
    transpose(a, PP, WF, PP)
    a(f"v_mfma_f32_32x32x16_bf16 v[{WF}:{WF+15}], v[{PK}:{PK+3}], v[{PP}:{PP+3}], 0")
    a(f"v_mfma_f32_32x32x16_bf16 v[{WF}:{WF+15}], v[{PK+4}:{PK+7}], v[{PP+4}:{PP+7}], v[{WF}:{WF+15}]")
    a(f"v_and_b32 v{T}, 16, v{V_LANE}"); a(f"v_cmp_eq_u32 vcc, 0, v{T}")
    a(f"s_lshl_b32 s{S_T0}, s{S_WAVE}, 11"); a(f"s_add_u32 s{S_T0}, s{S_T0}, {L_KVW}")
    a(f"v_lshlrev_b32 v{T+9}, 2, v{V_LANE}"); a(f"v_add_u32 v{T+9}, s{S_T0}, v{T+9}")
    for r in range(8): a(f"v_cndmask_b32 v{T+1+r}, v{WF+8+r}, v{WF+r}, vcc")
    for r in range(8): a(f"ds_write_b32 v{T+9}, v{T+1+r} offset:{256*r}")
    a.label(ldone)

def n_phase(a):
    T = TMP
    lskip = "L_n_skip"
    a(f"s_cmp_lg_u32 s{S_BTYP}, {T_G2}"); a(f"s_cbranch_scc1 {lskip}")
    a(f"v_lshrrev_b32 v{T+14}, 5, v{V_LANE}"); a(f"v_mul_u32_u24 v{T+14}, 7168, v{T+14}")
    a(f"v_and_b32 v{T+15}, 31, v{V_LANE}"); a(f"v_lshl_add_u32 v{T+14}, v{T+15}, 3, v{T+14}")
    a(f"s_lshl_b32 s{S_T0}, s{S_R}, 14"); a(f"s_lshl_b32 s{S_T1}, s{S_P}, 8"); a(f"s_add_u32 s{S_T0}, s{S_T0}, s{S_T1}"); a(f"s_add_u32 s{S_T0}, s{S_T0}, {WS_STATS}")
    a(f"s_add_u32 s{S_T1}, s{S_T0}, 4096")
    lp, lo = "L_n_poll", "L_n_ok"
    a(f"s_mov_b32 s{S_SPIN}, 0")
    a.label(lp)
    for k in range(7):
        so = S_T0 if k < 4 else S_T1
        a(f"buffer_load_dwordx2 v[{T+2*k}:{T+2*k+1}], v{T+14}, {WS}, s{so} offen offset:{(k&3)*1024} sc1")
    a("s_waitcnt vmcnt(0)")
    a(f"v_max3_u32 v{T+15}, v{T}, v{T+1}, v{T+2}")
    for k in range(3, 13, 2): a(f"v_max3_u32 v{T+15}, v{T+15}, v{T+k}, v{T+k+1}")
    a(f"v_max_u32 v{T+15}, v{T+15}, v{T+13}")
    a(f"v_cmp_eq_u32 vcc, -1, v{T+15}")
    spin_check(a, lo)
    a(f"s_cbranch_vccnz {lp}")
    a.label(lo)
    for k in range(1, 7):
        a(f"v_add_f32 v{T}, v{T}, v{T+2*k}"); a(f"v_add_f32 v{T+1}, v{T+1}, v{T+2*k+1}")
    a(f"v_mov_b32 v{T+2}, v{T}"); a(f"v_mov_b32 v{T+3}, v{T+1}")
    a(f"v_permlane32_swap_b32 v{T}, v{T+2}"); a(f"v_permlane32_swap_b32 v{T+1}, v{T+3}")
    a(f"v_add_f32 v{T}, v{T}, v{T+2}"); a(f"v_add_f32 v{T+1}, v{T+1}, v{T+3}")
    a(f"v_mul_f32 v{T}, {hexf(1/896)}, v{T}"); a(f"v_mul_f32 v{T+1}, {hexf(1/896)}, v{T+1}")
    a(f"v_fma_f32 v{T+1}, -v{T}, v{T}, v{T+1}"); a(f"v_max_f32 v{T+1}, 0, v{T+1}"); a(f"v_add_f32 v{T+1}, {hexf(1e-5)}, v{T+1}")
    a(f"v_rsq_f32 v{T+1}, v{T+1}")
    a(f"s_lshl_b32 s{S_T0}, s{S_C}, 2"); a(f"s_lshl_b32 s{S_T1}, s{S_E}, 1"); a(f"s_add_u32 s{S_T0}, s{S_T0}, s{S_T1}")
    a(f"s_lshl_b32 s{S_T0}, s{S_T0}, 6"); a(f"s_add_u32 s{S_T0}, s{S_T0}, s{S_B32}"); a(f"s_lshl_b32 s{S_T0}, s{S_T0}, 10"); a(f"s_add_u32 s{S_T0}, s{S_T0}, {WS_Z2N}")
    a(f"v_mul_f32 v{T}, v{T}, v{T+1}"); a(f"v_sub_f32 v{T}, 0, v{T}")
    for r in range(16): a(f"v_fma_f32 v{RET+r}, v{RET+r}, v{T+1}, v{T}")
    pack(a, RET, PP)
    transpose(a, PP, WF, PP)
    a(f"v_permlane32_swap_b32 v{PP}, v{PP+2}"); a(f"v_permlane32_swap_b32 v{PP+1}, v{PP+3}")
    a(f"v_permlane32_swap_b32 v{PP+4}, v{PP+6}"); a(f"v_permlane32_swap_b32 v{PP+5}, v{PP+7}")
    a(f"buffer_store_dwordx4 v[{PP}:{PP+3}], v{V_Z2O}, {WS}, s{S_T0} offen sc1")
    a(f"buffer_store_dwordx4 v[{PP+4}:{PP+7}], v{V_Z2O}, {WS}, s{S_T0} offen offset:512 sc1")
    a.label(lskip)

def check_flags(a, base, tag):
    lp, lo = f"L_fc{tag}_chk", f"L_fc{tag}_ok"
    a(f"s_mov_b32 s{S_SPIN}, 0")
    a.label(lp)
    a(f"v_xor_b32 v{V_FL}, s{S_TAG}, v{V_FL}"); a(f"v_xor_b32 v{V_FL+1}, s{S_TAG}, v{V_FL+1}"); a(f"v_xor_b32 v{V_FL+2}, s{S_TAG}, v{V_FL+2}"); a(f"v_xor_b32 v{V_FL+3}, s{S_TAG}, v{V_FL+3}")
    a(f"v_or_b32 v{V_FL}, v{V_FL}, v{V_FL+1}"); a(f"v_or3_b32 v{V_FL}, v{V_FL}, v{V_FL+2}, v{V_FL+3}")
    a(f"v_cmp_ne_u32 vcc, 0, v{V_FL}")
    a(f"s_cbranch_vccz {lo}")
    spin_check(a, lo)
    issue_flag_loads(a, base)
    a("s_waitcnt vmcnt(0)")
    a(f"s_branch {lp}")
    a.label(lo)
def issue_flag_loads(a, base):
    a(f"v_lshlrev_b32 v{V_M1}, 7, v{V_LANE}"); a(f"s_mov_b32 s{S_T0}, {base}")
    a(f"buffer_load_dwordx4 v[{V_FL}:{V_FL+3}], v{V_M1}, {WS}, s{S_T0} offen sc1")

def phaseA_main(a):
    T = TMP
    a(f"s_mov_b32 s{S_EPS6}, {hexf(1e-6)}")
    a(f"s_mov_b32 s{S_I}, 1"); a(f"s_mov_b32 s{S_CUR}, 0"); a(f"s_mov_b32 s{S_ECUR}, s{S_E}")
    a(f"s_mov_b32 s{S_CT}, s{S_BTYP}"); a(f"s_mov_b32 s{S_CI}, s{S_BIDX}")
    a(f"s_lshl_b32 s{S_PH}, s{S_E}, 1")
    a(f"s_cmp_lt_u32 s{S_C}, 8"); a(f"s_cselect_b32 s{S_NI}, 7, 6")
    a.label("L_A_loop")
    a(f"s_cmp_eq_u32 s{S_I}, 1"); a("s_cbranch_scc1 L_A_h1")
    a(f"s_cmp_eq_u32 s{S_I}, 3"); a("s_cbranch_scc1 L_A_h3")
    a(f"s_cmp_eq_u32 s{S_I}, 4"); a("s_cbranch_scc1 L_A_h4")
    a(f"s_cmp_eq_u32 s{S_I}, 5"); a("s_cbranch_scc0 L_A_hend")
    n_phase(a)
    a("s_branch L_A_hend")
    a.label("L_A_h1")
    for m in range(4, 8): w_dma(a, m, m-4)
    a("s_branch L_A_hend")
    a.label("L_A_h3")
    a(f"s_cmp_eq_u32 s{S_WAVE}, 4"); a("s_cbranch_scc0 L_A_hend")
    issue_flag_loads(a, WS_FINIT)
    a("s_branch L_A_hend")
    a.label("L_A_h4")
    a(f"s_cmp_eq_u32 s{S_WAVE}, 4"); a("s_cbranch_scc0 L_A_h4b")
    check_flags(a, WS_FINIT, "i")
    a.label("L_A_h4b")
    a(f"s_cmp_ge_u32 s{S_C}, 8"); a("s_cbranch_scc1 L_A_hend")
    set_wsrd(a, 3)
    for m in range(8): w_dma(a, m, 4+m)
    a.label("L_A_hend")
    stamp_dyn(a, 32)
    a(f"s_cmp_eq_u32 s{S_PH}, 1"); a("s_cbranch_scc1 L_A_M")
    a(f"s_cmp_eq_u32 s{S_PH}, 2"); a("s_cbranch_scc1 L_A_idle")
    e_phase(a, S_CT, S_CI)
    a(f"s_add_u32 s{S_CUR}, s{S_CUR}, 1")
    a(f"s_cmp_lt_u32 s{S_CUR}, s{S_NB}"); a(f"s_cselect_b32 s{S_PH}, 1, 3")
    a("s_branch L_A_w")
    a.label("L_A_M")
    a(f"s_mov_b32 s{S_LA}, {4*SLOT}"); a(f"s_mov_b32 s{S_LB}, {8*SLOT}")
    a(f"s_and_b32 s{S_T0}, s{S_C}, 1")
    a(f"s_cmp_eq_u32 s{S_CUR}, 2")
    a(f"s_cselect_b32 s{S_LA}, {14*SLOT}, s{S_LA}"); a(f"s_cselect_b32 s{S_LB}, 0, s{S_LB}")
    a(f"s_cselect_b32 s{S_CT}, s{S_BTYP+2}, s{S_BTYP+1}"); a(f"s_cselect_b32 s{S_CI}, s{S_BIDX+2}, s{S_BIDX+1}")
    a(f"s_cmp_eq_u32 s{S_CUR}, 3")
    a(f"s_cselect_b32 s{S_CT}, s{S_BTYP+3}, s{S_CT}"); a(f"s_cselect_b32 s{S_CI}, s{S_BIDX+3}, s{S_CI}")
    a(f"s_cselect_b32 s{S_ECUR}, s{S_T0}, s{S_E}")
    a("s_setprio 1")
    m_phase(a)
    a("s_setprio 0")
    a(f"s_mov_b32 s{S_PH}, 0")
    stamp_dyn(a, 48)
    a("s_waitcnt vmcnt(0)")
    a("s_branch L_A_bar")
    a.label("L_A_idle")
    a(f"s_mov_b32 s{S_PH}, 0")
    a.label("L_A_w")
    stamp_dyn(a, 48)
    a(f"s_cmp_eq_u32 s{S_I}, 1"); a("s_cbranch_scc0 L_A_bar")
    a("s_waitcnt vmcnt(8)")
    a.label("L_A_bar")
    a("s_waitcnt lgkmcnt(0)")
    a("s_barrier")
    stamp_dyn(a, 16)
    a(f"s_add_u32 s{S_I}, s{S_I}, 1")
    a(f"s_cmp_gt_u32 s{S_I}, s{S_NI}"); a("s_cbranch_scc1 L_A_done")
    a(f"s_cmp_eq_u32 s{S_PH}, 3"); a("s_cbranch_scc0 L_A_loop")
    a("s_branch L_A_bar")
    a.label("L_A_done")
    a(f"s_cmp_lt_u32 s{S_C}, 8"); a("s_cbranch_scc0 L_A_fin")
    a(f"v_lshlrev_b32 v{T}, 2, v{V_LANE}")
    a(f"s_lshl_b32 s{S_T0}, s{S_WAVE}, 8"); a(f"s_add_u32 s{S_T0}, s{S_T0}, {L_KVW}"); a(f"v_add_u32 v{T}, s{S_T0}, v{T}")
    for e in range(2):
        for p in range(4): a(f"ds_read_b32 v{T+2+4*e+p}, v{T} offset:{(4*e+p)*2048}")
    a(f"v_lshrrev_b32 v{T+1}, 5, v{V_LANE}"); a(f"v_lshlrev_b32 v{T+1}, 10, v{T+1}"); a(f"v_and_b32 v{T+10}, 31, v{V_LANE}"); a(f"v_lshl_add_u32 v{T+1}, v{T+10}, 2, v{T+1}")
    a(f"v_add_u32 v{T+1}, {L_ZW}, v{T+1}")
    for p in range(4):
        for h in range(2): a(f"ds_read_b32 v{WF+2*p+h}, v{T+1} offset:{p*256+h*128}")
    a(f"v_lshrrev_b32 v{T+11}, 4, v{V_LANE}"); a(f"v_and_b32 v{T+11}, 1, v{T+11}"); a(f"v_mul_u32_u24 v{T+11}, {288*4}, v{T+11}")
    a(f"v_lshrrev_b32 v{T+12}, 5, v{V_LANE}"); a(f"v_lshlrev_b32 v{T+12}, 4, v{T+12}"); a(f"v_and_b32 v{T+13}, 15, v{V_LANE}"); a(f"v_add_u32 v{T+12}, v{T+12}, v{T+13}")
    a(f"v_lshl_add_u32 v{T+11}, v{T+12}, 2, v{T+11}")
    a(f"s_lshl_b32 s{S_T0}, s{S_R}, 5"); a(f"s_lshl_b32 s{S_T1}, s{S_C}, 2"); a(f"s_add_u32 s{S_T0}, s{S_T0}, s{S_T1}"); a(f"s_mul_i32 s{S_T0}, s{S_T0}, {288*4}")
    a(f"s_add_u32 s{S_T2}, s{S_T0}, {WS_KVP}")
    a(f"s_lshl_b32 s{S_T1}, s{S_WAVE}, 7"); a(f"s_add_u32 s{S_T0}, s{S_T2}, s{S_T1}"); a(f"s_add_u32 s{S_T1}, s{S_T0}, {2*288*4}")
    a("s_waitcnt lgkmcnt(0)")
    for e in range(2):
        b = T+2+4*e
        a(f"v_add_f32 v{b}, v{b}, v{b+1}"); a(f"v_add_f32 v{b+2}, v{b+2}, v{b+3}"); a(f"v_add_f32 v{b}, v{b}, v{b+2}")
        a(f"buffer_store_dword v{b}, v{T+11}, {WS}, s{S_T0 if e == 0 else S_T1} offen sc1")
    for q in (0, 2, 4, 6): a(f"v_add_f32 v{WF+q}, v{WF+q}, v{WF+q+1}")
    a(f"v_add_f32 v{WF}, v{WF}, v{WF+2}"); a(f"v_add_f32 v{WF+4}, v{WF+4}, v{WF+6}"); a(f"v_add_f32 v{WF}, v{WF}, v{WF+4}")
    a(f"v_lshrrev_b32 v{T+11}, 4, v{V_LANE}"); a(f"v_mul_u32_u24 v{T+11}, {288*4}, v{T+11}")
    a(f"v_lshrrev_b32 v{T+12}, 2, v{T+13}"); a(f"v_and_b32 v{T+12}, 1, v{T+12}"); a(f"v_lshlrev_b32 v{T+12}, 3, v{T+12}")
    a(f"v_and_b32 v{T+14}, 3, v{T+13}"); a(f"v_add_u32 v{T+12}, v{T+12}, v{T+14}"); a(f"v_lshrrev_b32 v{T+14}, 3, v{T+13}"); a(f"v_lshl_add_u32 v{T+12}, v{T+14}, 2, v{T+12}")
    a(f"v_lshl_add_u32 v{T+11}, v{T+12}, 2, v{T+11}")
    a(f"s_add_u32 s{S_T2}, s{S_T2}, 1024"); a(f"s_cmp_lg_u32 s{S_WAVE}, 0"); a(f"s_cselect_b32 s{S_T2}, {OOB}, s{S_T2}")
    a(f"buffer_store_dword v{WF}, v{T+11}, {WS}, s{S_T2} offen sc1")
    a.label("L_A_fin")


B_R = 8
B_D = 4
ZF = 128
WB = 160
V_BW0 = 40; V_BW1 = 41; V_SPE = 42; V_SPO = 43; V_BA0 = 44; V_BA1 = 45
L_RED = 10 * SLOT

def srd_from(a, dst, ptr, nbytes):
    a(f"s_mov_b32 s{dst}, s{ptr}"); a(f"s_and_b32 s{dst+1}, s{ptr+1}, 0xffff"); a(f"s_mov_b32 s{dst+2}, {nbytes}"); a(f"s_mov_b32 s{dst+3}, 0x20000")

def flag_store(a, base):
    a(f"s_lshr_b32 s{S_T0}, s{S_WG}, 2"); a(f"s_lshl_b32 s{S_T0}, s{S_T0}, 7"); a(f"s_and_b32 s{S_T1}, s{S_WG}, 3"); a(f"s_lshl_b32 s{S_T1}, s{S_T1}, 2")
    a(f"s_add_u32 s{S_T0}, s{S_T0}, s{S_T1}"); a(f"s_add_u32 s{S_T0}, s{S_T0}, {base}")
    a(f"s_cmp_lg_u32 s{S_WAVE}, 0"); a(f"s_cselect_b32 s{S_T0}, {OOB}, s{S_T0}")
    a(f"v_mov_b32 v{V_M1}, s{S_TAG}"); a(f"v_mov_b32 v{V_M2}, 0")
    a(f"s_mov_b64 s[{S_SAVE}:{S_SAVE+1}], exec"); a("s_mov_b64 exec, 1")
    a(f"buffer_store_dword v{V_M1}, v{V_M2}, {WS}, s{S_T0} offen sc1")
    a(f"s_mov_b64 exec, s[{S_SAVE}:{S_SAVE+1}]")

def sp_dma_slab(a):
    a(f"s_lshl_b32 s{S_T0}, s{S_PSIG}, 7"); a(f"s_add_u32 s{S_T0}, s{S_T0}, s{S_SPB}")
    a(f"s_lshl_b32 s{S_T1}, s{S_PSL}, 13")
    for j in range(8):
        a(f"s_add_u32 m0, s{S_T1}, {j*1024}")
        if j: a(f"s_add_u32 s{S_T0}, s{S_T0}, {8*4096}")
        else: a("s_nop 0")
        a(f"buffer_load_dwordx4 v{V_SPE if j % 2 == 0 else V_SPO}, s[{SRD_T}:{SRD_T+3}], s{S_T0} offen lds")
    a(f"s_add_u32 s{S_PSIG}, s{S_PSIG}, 1"); a(f"s_and_b32 s{S_PSIG}, s{S_PSIG}, 31")
    a(f"s_add_u32 s{S_PSL}, s{S_PSL}, 1"); a(f"s_and_b32 s{S_PSL}, s{S_PSL}, {B_R-1}")

def z_load(a, slotidx):
    b = ZF + 8*slotidx
    a(f"s_add_u32 s{S_T0}, s{S_ZB}, s{S_ZNXT}")
    a(f"s_sub_u32 s{S_ZLEFT}, s{S_ZLEFT}, 1")
    a(f"s_cselect_b32 s{S_T0}, {OOB}, s{S_T0}")
    a(f"buffer_load_dwordx4 v[{b}:{b+3}], v{V_L16}, {WS}, s{S_T0} offen sc1")
    a(f"buffer_load_dwordx4 v[{b+4}:{b+7}], v{V_L16}, {WS}, s{S_T0} offen offset:1024 sc1")
    a(f"s_max_i32 s{S_ZLEFT}, s{S_ZLEFT}, 0")
    a(f"s_add_u32 s{S_ZNXT}, s{S_ZNXT}, 2048"); a(f"s_and_b32 s{S_ZNXT}, s{S_ZNXT}, 0xffff")

def phaseB(a):
    T = TMP; L = V_LANE
    a("s_waitcnt vmcnt(0)")
    a("s_barrier")
    flag_store(a, WS_FDONE)
    stamp(a, 7)
    a(f"s_and_b32 s{S_RHO}, s{S_BI}, 7"); a(f"s_lshl_b32 s{S_RHO}, s{S_RHO}, 2"); a(f"s_and_b32 s{S_T0}, s{S_BJ}, 3"); a(f"s_add_u32 s{S_RHO}, s{S_RHO}, s{S_T0}")
    a(f"s_mov_b32 s{S_TAU}, 0")
    a(f"s_cmp_eq_u32 s{S_WAVE}, 7"); a("s_cbranch_scc1 L_B_prod")
    a(f"s_mul_i32 s{S_ZB}, s{S_BJ}, 7"); a(f"s_add_u32 s{S_ZB}, s{S_ZB}, s{S_WAVE}"); a(f"s_lshl_b32 s{S_ZB}, s{S_ZB}, 16"); a(f"s_add_u32 s{S_ZB}, s{S_ZB}, {WS_Z2N}")
    a(f"s_lshl_b32 s{S_ZNXT}, s{S_RHO}, 11"); a(f"s_mov_b32 s{S_ZCUR}, s{S_ZNXT}")
    a(f"s_mov_b32 s{S_ZLEFT}, 32")
    for d in range(B_D): z_load(a, d)
    a(f"v_and_b32 v{T}, 15, v{L}"); a(f"v_lshrrev_b32 v{T+1}, 4, v{L}"); a(f"v_lshrrev_b32 v{T+2}, 1, v{T}")
    a(f"v_xor_b32 v{T+1}, v{T+1}, v{T+2}"); a(f"v_lshlrev_b32 v{T+1}, 4, v{T+1}"); a(f"v_lshl_add_u32 v{V_BW0}, v{T}, 7, v{T+1}"); a(f"v_xor_b32 v{V_BW1}, 64, v{V_BW0}")
    for r in range(16): a(f"v_mov_b32 v{ACC+r}, 0")
    a(f"s_mov_b32 s{S_SLOT}, 0")
    a.label("L_B_cl")
    for u in range(B_D):
        lr, lk = f"L_B_rt{u}", f"L_B_ok{u}"
        b = ZF + 8*u
        a("s_barrier")
        a(f"v_add_u32 v{V_BA0}, s{S_SLOT}, v{V_BW0}"); a(f"v_add_u32 v{V_BA1}, s{S_SLOT}, v{V_BW1}")
        for kk in range(2):
            for tt in range(4):
                w = WB + 16*kk + 4*tt
                a(f"ds_read_b128 v[{w}:{w+3}], v{V_BA0 if kk == 0 else V_BA1} offset:{tt*2048}")
        a(f"s_waitcnt vmcnt({2*(B_D-1)})")
        a(f"v_max3_u32 v{T}, v{b}, v{b+1}, v{b+2}"); a(f"v_max3_u32 v{T+1}, v{b+3}, v{b+4}, v{b+5}"); a(f"v_max3_u32 v{T}, v{T}, v{b+6}, v{b+7}"); a(f"v_max_u32 v{T}, v{T}, v{T+1}")
        a(f"v_cmp_eq_u32 vcc, -1, v{T}")
        a(f"s_cbranch_vccnz {lr}")
        a.label(lk)
        for kk in range(2):
            for tt in range(4):
                w = WB + 16*kk + 4*tt
                a(f"s_waitcnt lgkmcnt({7 - (4*kk+tt)})")
                a(f"v_mfma_f32_16x16x32_bf16 v[{ACC+4*tt}:{ACC+4*tt+3}], v[{b+4*kk}:{b+4*kk+3}], v[{w}:{w+3}], v[{ACC+4*tt}:{ACC+4*tt+3}]")
        z_load(a, u)
        a(f"s_add_u32 s{S_ZCUR}, s{S_ZCUR}, 2048"); a(f"s_and_b32 s{S_ZCUR}, s{S_ZCUR}, 0xffff")
        a(f"s_add_u32 s{S_SLOT}, s{S_SLOT}, {SLOT}"); a(f"s_and_b32 s{S_SLOT}, s{S_SLOT}, {B_R*SLOT-1}")
    a(f"s_add_u32 s{S_TAU}, s{S_TAU}, {B_D}"); a(f"s_cmp_lt_u32 s{S_TAU}, 32"); a("s_cbranch_scc1 L_B_cl")
    a("s_branch L_B_epi")
    for u in range(B_D):
        lr, lk = f"L_B_rt{u}", f"L_B_ok{u}"
        b = ZF + 8*u
        a.label(lr)
        a(f"s_mov_b32 s{S_SPIN}, 0")
        a.label(lr + "_l")
        a(f"s_add_u32 s{S_T0}, s{S_ZB}, s{S_ZCUR}")
        a(f"buffer_load_dwordx4 v[{b}:{b+3}], v{V_L16}, {WS}, s{S_T0} offen sc1")
        a(f"buffer_load_dwordx4 v[{b+4}:{b+7}], v{V_L16}, {WS}, s{S_T0} offen offset:1024 sc1")
        a("s_waitcnt vmcnt(0)")
        a(f"v_max3_u32 v{T}, v{b}, v{b+1}, v{b+2}"); a(f"v_max3_u32 v{T+1}, v{b+3}, v{b+4}, v{b+5}"); a(f"v_max3_u32 v{T}, v{T}, v{b+6}, v{b+7}"); a(f"v_max_u32 v{T}, v{T}, v{T+1}")
        a(f"v_cmp_eq_u32 vcc, -1, v{T}")
        spin_check(a, lk)
        a(f"s_cbranch_vccnz {lr}_l")
        a(f"s_branch {lk}")
    a.label("L_B_epi")
    a("s_barrier")
    stamp(a, 9)
    a(f"s_mul_i32 s{S_T0}, s{S_BI}, 112"); a(f"s_mul_i32 s{S_T1}, s{S_BJ}, 7"); a(f"s_add_u32 s{S_T0}, s{S_T0}, s{S_T1}"); a(f"s_add_u32 s{S_T0}, s{S_T0}, s{S_WAVE}")
    a(f"s_lshl_b32 s{S_T0}, s{S_T0}, 10"); a(f"s_add_u32 s{S_T2}, s{S_T0}, {WS_U}"); a(f"s_add_u32 s{S_T0}, s{S_T0}, {WS_Z1}"); a(f"s_add_u32 s{S_T1}, s{S_T0}, {56*1024}")
    Z = WB
    a(f"buffer_load_dwordx4 v[{Z}:{Z+3}], v{V_L16}, {WS}, s{S_T0} offen sc1"); a(f"buffer_load_dwordx4 v[{Z+4}:{Z+7}], v{V_L16}, {WS}, s{S_T1} offen sc1")
    srd_from(a, SRD_W, P_BSP, 4096)
    a(f"v_and_b32 v{T}, 15, v{L}"); a(f"v_lshlrev_b32 v{T}, 1, v{T}"); a(f"s_lshl_b32 s{S_T0}, s{S_BI}, 7")
    for tt in range(4): a(f"buffer_load_ushort v{T+1+tt}, v{T}, s[{SRD_W}:{SRD_W+3}], s{S_T0} offen offset:{32*tt}")
    a("s_waitcnt vmcnt(0)")
    for tt in range(4):
        a(f"v_lshlrev_b32 v{T+1+tt}, 16, v{T+1+tt}")
    for tt in range(4):
        zr = Z + 4*(tt >> 1) + 2*(tt & 1)
        for i in range(4): a(f"v_add_f32 v{ACC+4*tt+i}, v{ACC+4*tt+i}, v{T+1+tt}")
        a(f"v_lshlrev_b32 v{T+6}, 16, v{zr}"); a(f"v_and_b32 v{T+7}, 0xffff0000, v{zr}"); a(f"v_lshlrev_b32 v{T+8}, 16, v{zr+1}"); a(f"v_and_b32 v{T+9}, 0xffff0000, v{zr+1}")
        for i in range(4): a(f"v_mul_f32 v{ACC+4*tt+i}, v{ACC+4*tt+i}, v{T+6+i}")
    pack(a, ACC, PP)
    for m in range(2):
        b = PP + 4*m
        a(f"v_permlane16_swap_b32 v{b}, v{b+2}"); a(f"v_permlane16_swap_b32 v{b+1}, v{b+3}")
    a(f"s_add_u32 s{S_T1}, s{S_T2}, {56*1024}")
    a(f"buffer_store_dwordx4 v[{PP}:{PP+3}], v{V_L16}, {WS}, s{S_T2} offen sc1"); a(f"buffer_store_dwordx4 v[{PP+4}:{PP+7}], v{V_L16}, {WS}, s{S_T1} offen sc1")
    a("s_branch L_B_end")
    a.label("L_B_prod")
    srd_from(a, SRD_T, P_WSP, 2048*2048*2)
    a(f"v_lshrrev_b32 v{T}, 3, v{L}"); a(f"v_and_b32 v{T+1}, 7, v{L}"); a(f"v_lshrrev_b32 v{T+2}, 1, v{T}")
    a(f"v_xor_b32 v{T+1}, v{T+1}, v{T+2}"); a(f"v_lshlrev_b32 v{T+1}, 4, v{T+1}"); a(f"v_lshl_add_u32 v{V_SPE}, v{T}, 12, v{T+1}"); a(f"v_xor_b32 v{V_SPO}, 64, v{V_SPE}")
    a(f"s_lshl_b32 s{S_SPB}, s{S_BI}, 18")
    a(f"s_mov_b32 s{S_PSIG}, s{S_RHO}"); a(f"s_mov_b32 s{S_PSL}, 0")
    for k in range(B_R-1): sp_dma_slab(a)
    a.label("L_B_pl")
    a(f"s_cmp_lt_u32 s{S_TAU}, {32-(B_R-1)+1}"); a("s_cbranch_scc0 L_B_pw0")
    a(f"s_waitcnt vmcnt({8*(B_R-2)})"); a("s_branch L_B_pw1")
    a.label("L_B_pw0")
    a("s_waitcnt vmcnt(0)")
    a.label("L_B_pw1")
    a("s_barrier")
    a(f"s_cmp_lt_u32 s{S_TAU}, {32-(B_R-1)}"); a("s_cbranch_scc0 L_B_pn")
    sp_dma_slab(a)
    a.label("L_B_pn")
    pj = producer_jobs(a)
    a(f"s_add_u32 s{S_TAU}, s{S_TAU}, 1"); a(f"s_cmp_lt_u32 s{S_TAU}, 32"); a("s_cbranch_scc1 L_B_pl")
    a("s_barrier")
    a.label("L_B_end")

RP = 128
def producer_jobs(a):
    T = TMP; L = V_LANE
    l1, l2, l3, le = "L_PJ1", "L_PJ2", "L_PJ3", "L_PJe"
    a(f"s_cmp_eq_u32 s{S_TAU}, 8"); a(f"s_cbranch_scc1 {l1}")
    a(f"s_cmp_eq_u32 s{S_TAU}, 16"); a(f"s_cbranch_scc1 {l2}")
    a(f"s_cmp_eq_u32 s{S_TAU}, 25"); a(f"s_cbranch_scc1 {l3}")
    a(f"s_branch {le}")
    a.label(l1)
    issue_flag_loads(a, WS_FDONE)
    a(f"s_branch {le}")
    a.label(l2)
    check_flags(a, WS_FDONE, "d")
    a(f"s_cmp_ge_u32 s{S_WG}, 32"); a(f"s_cbranch_scc1 {le}")
    a(f"s_mul_i32 s{S_T0}, s{S_WG}, 1152"); a(f"s_add_u32 s{S_T0}, s{S_T0}, {WS_KVP}")
    for r in range(16):
        a(f"buffer_load_dwordx4 v[{RP+4*r}:{RP+4*r+3}], v{V_L16}, {WS}, s{S_T0} offen sc1")
        if r < 15: a(f"s_add_u32 s{S_T0}, s{S_T0}, {32*1152}")
    a(f"v_lshrrev_b32 v{T}, 2, v{L}"); a(f"v_mul_u32_u24 v{T}, {32*1152}, v{T}"); a(f"v_and_b32 v{T+1}, 3, v{L}"); a(f"v_lshl_add_u32 v{T}, v{T+1}, 4, v{T}")
    a(f"s_mul_i32 s{S_T0}, s{S_WG}, 1152"); a(f"s_add_u32 s{S_T0}, s{S_T0}, {WS_KVP+1024}")
    a(f"buffer_load_dwordx4 v[{RP+64}:{RP+67}], v{T}, {WS}, s{S_T0} offen sc1")
    a(f"s_branch {le}")
    a.label(l3)
    a(f"s_cmp_ge_u32 s{S_WG}, 32"); a(f"s_cbranch_scc1 {le}")
    for r in range(1, 16):
        for d in range(4): a(f"v_add_f32 v{RP+d}, v{RP+d}, v{RP+4*r+d}")
    Zr = RP + 64
    for d in range(4):
        a(f"v_add_f32_dpp v{Zr+d}, v{Zr+d}, v{Zr+d} row_ror:4 row_mask:0xf bank_mask:0xf")
    for d in range(4):
        a(f"v_add_f32_dpp v{Zr+d}, v{Zr+d}, v{Zr+d} row_ror:8 row_mask:0xf bank_mask:0xf")
    for d in range(4):
        a(f"v_mov_b32 v{T+d}, v{Zr+d}")
    for d in range(4):
        a(f"v_permlane16_swap_b32 v{Zr+d}, v{T+d}")
    for d in range(4):
        a(f"v_add_f32 v{Zr+d}, v{Zr+d}, v{T+d}")
    for d in range(4):
        a(f"v_mov_b32 v{T+d}, v{Zr+d}")
    for d in range(4):
        a(f"v_permlane32_swap_b32 v{Zr+d}, v{T+d}")
    for d in range(4):
        a(f"v_add_f32 v{Zr+d}, v{Zr+d}, v{T+d}")
    a(f"v_add_u32 v{T+4}, {L_RED}, v{V_L16}")
    a(f"ds_write_b128 v{T+4}, v[{RP}:{RP+3}]")
    a(f"v_and_b32 v{T+5}, 3, v{L}"); a(f"v_lshlrev_b32 v{T+5}, 4, v{T+5}"); a(f"v_add_u32 v{T+5}, {L_RED+1024}, v{T+5}")
    a(f"ds_write_b128 v{T+5}, v[{Zr}:{Zr+3}]")
    a(f"v_and_b32 v{T+6}, 15, v{L}"); a(f"v_lshrrev_b32 v{T+7}, 5, v{L}"); a(f"v_lshl_add_u32 v{T+6}, v{T+7}, 4, v{T+6}"); a(f"v_lshlrev_b32 v{T+6}, 2, v{T+6}"); a(f"v_add_u32 v{T+6}, {L_RED}, v{T+6}")
    a(f"v_lshlrev_b32 v{T+7}, 5, v{T+7}"); a(f"v_add_u32 v{T+7}, {L_RED+1024}, v{T+7}")
    a("s_waitcnt lgkmcnt(0)")
    for jj in range(8): a(f"ds_read_b32 v{RP+8+jj}, v{T+6} offset:{128*jj}")
    a(f"ds_read_b128 v[{RP+16}:{RP+19}], v{T+7}"); a(f"ds_read_b128 v[{RP+20}:{RP+23}], v{T+7} offset:16")
    a(f"v_and_b32 v{T+8}, 16, v{L}"); a(f"v_cmp_eq_u32 vcc, 0, v{T+8}")
    a("s_waitcnt lgkmcnt(0)")
    for jj in range(8): a(f"v_cndmask_b32 v{RP+8+jj}, v{RP+16+jj}, v{RP+8+jj}, vcc")
    for q in range(4): a(f"v_cvt_pk_bf16_f32 v{RP+24+q}, v{RP+8+2*q}, v{RP+9+2*q}")
    a(f"s_lshl_b32 s{S_T0}, s{S_WG}, 10"); a(f"s_add_u32 s{S_T0}, s{S_T0}, {WS_KVT}")
    a(f"buffer_store_dwordx4 v[{RP+24}:{RP+27}], v{V_L16}, {WS}, s{S_T0} offen sc1")
    a.label(le)


PQF = 128; KVF = 160; UF = 192; AS = 48; AT = 80; CD = 112; CO = 248; CW = 16
V_CD = 40; V_CWA = 41; V_CWO = 42; V_CX = 43
S_TM = 50; S_Q = 51; S_CB32 = 52

def sentinel_check(a, regs, tmp):
    r = list(regs)
    a(f"v_max3_u32 v{tmp}, v{r[0]}, v{r[1]}, v{r[2]}"); r = r[3:]
    while len(r) >= 2:
        a(f"v_max3_u32 v{tmp}, v{tmp}, v{r[0]}, v{r[1]}"); r = r[2:]
    if r: a(f"v_max_u32 v{tmp}, v{tmp}, v{r[0]}")
    a(f"v_cmp_eq_u32 vcc, -1, v{tmp}")

def phaseC(a):
    T = TMP; L = V_LANE
    T = 32
    a(f"s_lshr_b32 s{S_TM}, s{S_WAVE}, 2"); a(f"s_and_b32 s{S_Q}, s{S_WAVE}, 3")
    a(f"s_lshl_b32 s{S_CB32}, s{S_BI}, 1"); a(f"s_add_u32 s{S_CB32}, s{S_CB32}, s{S_TM}")
    srd_from(a, SRD_W, P_WO, 512*512*2); srd_from(a, SRD_T, P_WOUT, 896*512*2)
    a(f"v_lshrrev_b32 v{T}, 3, v{L}"); a(f"v_and_b32 v{T+1}, 7, v{L}"); a(f"v_lshrrev_b32 v{T+2}, 1, v{T}"); a(f"v_and_b32 v{T+2}, 1, v{T+2}"); a(f"v_lshlrev_b32 v{T+2}, 2, v{T+2}")
    a(f"v_xor_b32 v{T+1}, v{T+1}, v{T+2}"); a(f"v_lshlrev_b32 v{T+1}, 4, v{T+1}"); a(f"v_lshl_add_u32 v{V_CD}, v{T}, 10, v{T+1}")
    a(f"s_lshl_b32 s{S_T0}, s{S_CB32}, 5"); a(f"s_lshl_b32 s{S_T1}, s{S_Q}, 3"); a(f"s_add_u32 s{S_T0}, s{S_T0}, s{S_T1}"); a(f"s_lshl_b32 s{S_T0}, s{S_T0}, 10"); a(f"s_add_u32 s{S_T0}, s{S_T0}, {WS_PQ}")
    a(f"s_lshl_b32 s{S_T2}, s{S_T1}, 10"); a(f"s_add_u32 s{S_T2}, s{S_T2}, {WS_KVT}")
    def kv_loads():
        for k in range(8):
            so = S_T2 if k < 4 else S_T3
            a(f"buffer_load_dwordx4 v[{KVF+4*k}:{KVF+4*k+3}], v{V_L16}, {WS}, s{so} offen offset:{(k&3)*1024} sc1")
    a(f"s_add_u32 s{S_T3}, s{S_T2}, 4096")
    a(f"s_mov_b32 s{S_LA}, s{S_T2}"); a(f"s_mov_b32 s{S_LB}, s{S_T3}")
    kv_loads()
    a(f"s_add_u32 s{S_T1}, s{S_T0}, 4096")
    for k in range(8):
        a(f"buffer_load_dwordx4 v[{PQF+4*k}:{PQF+4*k+3}], v{V_L16}, {WS}, s{S_T0 if k < 4 else S_T1} offen offset:{(k&3)*1024} sc1")
    a(f"s_lshl_b32 s{S_T0}, s{S_WAVE}, 16"); a(f"s_lshl_b32 s{S_T1}, s{S_BJ}, 7"); a(f"s_add_u32 s{S_T0}, s{S_T0}, s{S_T1}")
    a(f"s_lshl_b32 s{S_T2}, s{S_WAVE}, 13")
    for k in range(8):
        a(f"s_add_u32 m0, s{S_T2}, {k*1024}")
        if k: a(f"s_add_u32 s{S_T0}, s{S_T0}, 8192")
        else: a("s_nop 0")
        a(f"buffer_load_dwordx4 v{V_CD}, s[{SRD_W}:{SRD_W+3}], s{S_T0} offen lds")
    a(f"s_lshr_b32 s{S_T2}, s{S_WAVE}, 1"); a(f"s_and_b32 s{S_T3}, s{S_WAVE}, 1")
    a(f"s_mul_i32 s{S_T0}, s{S_T2}, 224"); a(f"s_mul_i32 s{S_SPB}, s{S_T3}, 96"); a(f"s_add_u32 s{S_T0}, s{S_T0}, s{S_SPB}"); a(f"s_lshl_b32 s{S_T0}, s{S_T0}, 10"); a(f"s_add_u32 s{S_T0}, s{S_T0}, s{S_T1}")
    a(f"s_mul_i32 s{S_T2}, s{S_T2}, 24576"); a(f"s_mul_i32 s{S_T3}, s{S_T3}, 12288"); a(f"s_add_u32 s{S_T2}, s{S_T2}, s{S_T3}"); a(f"s_add_u32 s{S_T2}, s{S_T2}, {8*SLOT}")
    for k in range(12):
        a(f"s_add_u32 m0, s{S_T2}, {k*1024}")
        if k: a(f"s_add_u32 s{S_T0}, s{S_T0}, 8192")
        else: a("s_nop 0")
        a(f"buffer_load_dwordx4 v{V_CD}, s[{SRD_T}:{SRD_T+3}], s{S_T0} offen lds")
    a(f"s_mul_i32 s{S_ZB}, s{S_CB32}, 56"); a(f"s_mul_i32 s{S_T0}, s{S_Q}, 14"); a(f"s_add_u32 s{S_ZB}, s{S_ZB}, s{S_T0}"); a(f"s_lshl_b32 s{S_ZB}, s{S_ZB}, 10"); a(f"s_add_u32 s{S_ZB}, s{S_ZB}, {WS_U}")
    def u_loads():
        for k in range(14):
            if k % 4 == 0: a(f"s_add_u32 s{S_T0}, s{S_ZB}, {k*1024}")
            a(f"buffer_load_dwordx4 v[{UF+4*k}:{UF+4*k+3}], v{V_L16}, {WS}, s{S_T0} offen offset:{(k&3)*1024} sc1")
    u_loads()
    a(f"v_lshrrev_b32 v{T}, 5, v{L}"); a(f"v_lshlrev_b32 v{T}, 9, v{T}"); a(f"v_sub_u32 v{V_CWO}, v{V_WA}, v{T}")
    a(f"s_lshl_b32 s{S_T0}, s{S_Q}, 14"); a(f"v_add_u32 v{V_CWO}, s{S_T0}, v{V_CWO}")
    a(f"s_mul_i32 s{S_T0}, s{S_Q}, 24576"); a(f"s_add_u32 s{S_T0}, s{S_T0}, {8*SLOT}"); a(f"v_add_u32 v{V_CWA}, s{S_T0}, v{V_WA}")
    for r in range(64): a(f"v_mov_b32 v{AS+r}, 0")
    a("s_waitcnt vmcnt(26)")
    a("s_barrier")
    stamp(a, 11)
    a(f"s_mov_b32 s{S_SPIN}, 0")
    a.label("L_C_kvchk")
    sentinel_check(a, range(KVF, KVF+32), T)
    a("s_cbranch_vccz L_C_kvok")
    spin_check(a, "L_C_kvok")
    a(f"s_mov_b32 s{S_T2}, s{S_LA}"); a(f"s_mov_b32 s{S_T3}, s{S_LB}")
    kv_loads()
    a("s_waitcnt vmcnt(0)")
    a("s_branch L_C_kvchk")
    a.label("L_C_kvok")
    a(f"v_xor_b32 v{T+4}, 64, v{V_CWO}")
    for k in range(8):
        a(f"v_mfma_f32_32x32x16_bf16 v[{CD}:{CD+15}], v[{KVF+4*k}:{KVF+4*k+3}], v[{PQF+4*k}:{PQF+4*k+3}], 0")
        for ch in range(2):
            base = V_CWO if ch == 0 else T+4
            w = CW + 4*ch
            a(f"ds_read_b64_tr_b16 v[{w}:{w+1}], v{base} offset:{k*2048}"); a(f"ds_read_b64_tr_b16 v[{w+2}:{w+3}], v{base} offset:{k*2048+1024}")
        a(f"v_add_f32 v{T}, s{S_EPS6}, v{CD+8}"); a(f"v_rcp_f32 v{T}, v{T}")
        for r in range(8): a(f"v_mul_f32 v{CD+r}, v{CD+r}, v{T}")
        for q in range(4): a(f"v_cvt_pk_bf16_f32 v{CO+q}, v{CD+2*q}, v{CD+2*q+1}")
        a("s_waitcnt lgkmcnt(0)")
        for ch in range(2):
            w = CW + 4*ch
            a(f"v_mfma_f32_32x32x16_bf16 v[{AS+16*ch}:{AS+16*ch+15}], v[{w}:{w+3}], v[{CO}:{CO+3}], v[{AS+16*ch}:{AS+16*ch+15}]")
    a("s_waitcnt vmcnt(14)")
    a("s_barrier")
    a(f"s_lshr_b32 s{S_T2}, s{S_WAVE}, 1"); a(f"s_and_b32 s{S_T3}, s{S_WAVE}, 1")
    a(f"s_mul_i32 s{S_T0}, s{S_T2}, 224"); a(f"s_lshl_b32 s{S_T1}, s{S_T3}, 4"); a(f"s_add_u32 s{S_T0}, s{S_T0}, s{S_T1}"); a(f"s_add_u32 s{S_T0}, s{S_T0}, 192")
    a(f"s_lshl_b32 s{S_T0}, s{S_T0}, 10"); a(f"s_lshl_b32 s{S_T1}, s{S_BJ}, 7"); a(f"s_add_u32 s{S_T0}, s{S_T0}, s{S_T1}")
    a(f"s_lshl_b32 s{S_T2}, s{S_T2}, 12"); a(f"s_lshl_b32 s{S_T3}, s{S_T3}, 11"); a(f"s_add_u32 s{S_T2}, s{S_T2}, s{S_T3}")
    for k in range(2):
        a(f"s_add_u32 m0, s{S_T2}, {k*1024}")
        if k: a(f"s_add_u32 s{S_T0}, s{S_T0}, 8192")
        else: a("s_nop 0")
        a(f"buffer_load_dwordx4 v{V_CD}, s[{SRD_T}:{SRD_T+3}], s{S_T0} offen lds")
    a("s_waitcnt vmcnt(2)")
    a(f"s_mov_b32 s{S_SPIN}, 0")
    a.label("L_C_uchk")
    sentinel_check(a, range(UF, UF+56), T)
    a("s_cbranch_vccz L_C_uok")
    spin_check(a, "L_C_uok")
    u_loads()
    a("s_waitcnt vmcnt(0)")
    a("s_branch L_C_uchk")
    a.label("L_C_uok")
    stamp(a, 12)
    a(f"v_xor_b32 v{T+4}, 64, v{V_CWA}")
    def tstep(k, b0, b1, off):
        for ch in range(2):
            base = b0 if ch == 0 else b1
            w = CW + 8*(k & 1) + 4*ch
            a(f"ds_read_b64_tr_b16 v[{w}:{w+1}], v{base} offset:{off}"); a(f"ds_read_b64_tr_b16 v[{w+2}:{w+3}], v{base} offset:{off+512}")
    def tmfma(k):
        for ch in range(2):
            w = CW + 8*(k & 1) + 4*ch
            a(f"v_mfma_f32_32x32x16_bf16 v[{AT+16*ch}:{AT+16*ch+15}], v[{w}:{w+3}], v[{UF+4*k}:{UF+4*k+3}], v[{AT+16*ch}:{AT+16*ch+15}]")
    tstep(0, V_CWA, T+4, 0)
    for k in range(12):
        if k < 11:
            tstep(k+1, V_CWA, T+4, (k+1)*2048); a("s_waitcnt lgkmcnt(4)")
        else: a("s_waitcnt lgkmcnt(0)")
        tmfma(k)
    a("s_waitcnt vmcnt(0)")
    a("s_barrier")
    a(f"s_lshl_b32 s{S_T0}, s{S_Q}, 12"); a(f"v_add_u32 v{T+5}, s{S_T0}, v{V_WA}"); a(f"v_xor_b32 v{T+6}, 64, v{T+5}")
    tstep(12, T+5, T+6, 0); tstep(13, T+5, T+6, 2048)
    a("s_waitcnt lgkmcnt(4)"); tmfma(12); a("s_waitcnt lgkmcnt(0)"); tmfma(13)
    a("s_barrier")
    stamp(a, 13)
    a(f"s_lshl_b32 s{S_T0}, s{S_TM}, 16"); a(f"s_lshl_b32 s{S_T1}, s{S_Q}, 12"); a(f"s_add_u32 s{S_T0}, s{S_T0}, s{S_T1}")
    a(f"v_add_u32 v{T}, s{S_T0}, v{V_L16}")
    for qd in range(4):
        ch, hf = qd >> 1, qd & 1
        lsk = f"L_C_w{qd}"
        a(f"s_cmp_eq_u32 s{S_Q}, {qd}"); a(f"s_cbranch_scc1 {lsk}")
        srcS = AS + 16*ch + 8*hf; srcT = AT + 16*ch + 8*hf
        a(f"ds_write_b128 v{T}, v[{srcS}:{srcS+3}] offset:{qd*16384}"); a(f"ds_write_b128 v{T}, v[{srcS+4}:{srcS+7}] offset:{qd*16384+1024}")
        a(f"ds_write_b128 v{T}, v[{srcT}:{srcT+3}] offset:{qd*16384+2048}"); a(f"ds_write_b128 v{T}, v[{srcT+4}:{srcT+7}] offset:{qd*16384+3072}")
        a.label(lsk)
    FS, FT = 112, 120
    for qd in range(4):
        ch, hf = qd >> 1, qd & 1
        lsk = f"L_C_o{qd}"
        a(f"s_cmp_lg_u32 s{S_Q}, {qd}"); a(f"s_cbranch_scc1 {lsk}")
        for r in range(8): a(f"v_mov_b32 v{FS+r}, v{AS+16*ch+8*hf+r}"); a(f"v_mov_b32 v{FT+r}, v{AT+16*ch+8*hf+r}")
        a.label(lsk)
    a(f"v_and_b32 v{T+1}, 31, v{L}"); a(f"v_lshlrev_b32 v{T+1}, 10, v{T+1}"); a(f"v_lshrrev_b32 v{T+2}, 5, v{L}"); a(f"v_lshl_add_u32 v{V_CX}, v{T+2}, 3, v{T+1}")
    a(f"s_lshl_b32 s{S_T0}, s{S_CB32}, 15"); a(f"s_lshl_b32 s{S_T1}, s{S_BJ}, 7"); a(f"s_add_u32 s{S_T0}, s{S_T0}, s{S_T1}"); a(f"s_lshl_b32 s{S_T1}, s{S_Q}, 5"); a(f"s_add_u32 s{S_ZB}, s{S_T0}, s{S_T1}")
    XR = 128
    a(f"buffer_load_dwordx2 v[{XR}:{XR+1}], v{V_CX}, s[{SRD_X}:{SRD_X+3}], s{S_ZB} offen"); a(f"buffer_load_dwordx2 v[{XR+2}:{XR+3}], v{V_CX}, s[{SRD_X}:{SRD_X+3}], s{S_ZB} offen offset:16")
    a("s_waitcnt lgkmcnt(0)")
    a("s_barrier")
    a(f"s_lshl_b32 s{S_T0}, s{S_TM}, 16"); a(f"s_lshl_b32 s{S_T1}, s{S_Q}, 14"); a(f"s_add_u32 s{S_T0}, s{S_T0}, s{S_T1}"); a(f"v_add_u32 v{T}, s{S_T0}, v{V_L16}")
    RB = 136
    for qs in range(4):
        lsk = f"L_C_r{qs}"
        a(f"s_cmp_eq_u32 s{S_Q}, {qs}"); a(f"s_cbranch_scc1 {lsk}")
        for c4 in range(4): a(f"ds_read_b128 v[{RB+4*c4}:{RB+4*c4+3}], v{T} offset:{qs*4096+c4*1024}")
        a("s_waitcnt lgkmcnt(0)")
        for r in range(8): a(f"v_add_f32 v{FS+r}, v{FS+r}, v{RB+r}"); a(f"v_add_f32 v{FT+r}, v{FT+r}, v{RB+8+r}")
        a.label(lsk)
    E_ = 152
    for r in range(8): a(f"v_mul_f32 v{E_+r}, {hexf(-LOG2E)}, v{FT+r}")
    for r in range(8): a(f"v_exp_f32 v{E_+r}, v{E_+r}")
    for r in range(8): a(f"v_add_f32 v{E_+r}, 1.0, v{E_+r}")
    for r in range(8): a(f"v_rcp_f32 v{E_+r}, v{E_+r}")
    for r in range(8): a(f"v_mul_f32 v{E_+r}, v{FT+r}, v{E_+r}")
    a("s_waitcnt vmcnt(0)")
    for q in range(4):
        a(f"v_lshlrev_b32 v{RB+2*q}, 16, v{XR+q}"); a(f"v_and_b32 v{RB+2*q+1}, 0xffff0000, v{XR+q}")
    for r in range(8): a(f"v_fma_f32 v{RB+r}, v{FS+r}, v{E_+r}, v{RB+r}")
    for q in range(4): a(f"v_cvt_pk_bf16_f32 v{XR+q}, v{RB+2*q}, v{RB+2*q+1}")
    srd_from(a, SRD_W, P_OUT, 2048*512*2)
    a(f"buffer_store_dwordx2 v[{XR}:{XR+1}], v{V_CX}, s[{SRD_W}:{SRD_W+3}], s{S_ZB} offen"); a(f"buffer_store_dwordx2 v[{XR+2}:{XR+3}], v{V_CX}, s[{SRD_W}:{SRD_W+3}], s{S_ZB} offen offset:16")
    a(f"s_or_b32 s{S_T0}, s{S_WG}, s{S_WAVE}"); a(f"s_cmp_eq_u32 s{S_T0}, 0"); a(f"s_cselect_b32 s{S_T0}, {WS_EPOCH}, {OOB}") if False else None
    a(f"s_mov_b32 s{S_T1}, {WS_EPOCH}"); a(f"s_or_b32 s{S_T0}, s{S_WG}, s{S_WAVE}"); a(f"s_cmp_eq_u32 s{S_T0}, 0"); a(f"s_cselect_b32 s{S_T0}, s{S_T1}, {OOB}")
    a(f"v_mov_b32 v{V_M1}, s{S_TAG}"); a(f"v_mov_b32 v{V_M2}, 0")
    a("s_mov_b64 exec, 1")
    a(f"buffer_store_dword v{V_M1}, v{V_M2}, {WS}, s{S_T0} offen sc1")
    a("s_mov_b64 exec, -1")

def kernel_footer(K, nv=256, ns=102):
    return f""".p2align 6
.amdhsa_kernel {K}
  .amdhsa_next_free_vgpr {nv}
  .amdhsa_next_free_sgpr {ns}
  .amdhsa_accum_offset {nv}
  .amdhsa_group_segment_fixed_size 0
  .amdhsa_kernarg_size 88
  .amdhsa_user_sgpr_count 2
  .amdhsa_user_sgpr_kernarg_segment_ptr 1
  .amdhsa_system_sgpr_workgroup_id_x 1
.end_amdhsa_kernel
"""

def emit_phaseA(a):
    vm = VM()
    setup_first(a)
    issue_initial(a, vm)
    finish_ws_srd(a)
    issue_clears(a, vm)
    setup_lane_consts(a)
    stamp(a, 1)
    phase0(a, vm)
    pass1(a, vm)
    stamp(a, 5)
    phaseA_main(a)

def build(dbg=False, upto="A"):
    global DBG
    DBG = dbg
    a = Asm()
    if dbg: a(f"v_mov_b32 v{V_ST}, 0")
    stamp(a, 0)
    emit_phaseA(a)
    stamp(a, 6)
    if upto >= "B":
        phaseB(a)
        stamp(a, 10)
    if upto >= "C":
        phaseC(a)
        stamp(a, 14)
    a("s_waitcnt vmcnt(0)")
    stamp(a, 8)
    dump_stamps(a)
    a("s_waitcnt vmcnt(0)")
    a.label("L_end")
    a("s_endpgm")
    a.fix_hazards()
    hdr = f"; @launch grid=(256,1,1) block=(512,1,1) lds={LDS_BYTES}\n.amdgcn_target \"amdgcn-amd-amdhsa--gfx950\"\n.text\n.globl {KNAME}\n.p2align 8\n.type {KNAME},@function\n{KNAME}:\n"
    return hdr + a.text() + '.section .rodata,"a"\n' + kernel_footer(KNAME)

if __name__ == "__main__":
    out = sys.argv[1] if len(sys.argv) > 1 else "k3.s"
    open(out, "w").write(build(dbg=('nodbg' not in OPT), upto=os.environ.get("UPTO", "C")))
    print("written", out)
```

```python
import sys, math, os, struct
sys.path.insert(0, "dev")
from asmlib import Asm

KNAME = "recurrent_scan__linear_attn_block__mixer_gmlp__prompt_kernel"
OPT = set(os.environ.get('GOPT', '').split(','))

WS_FINIT = 0x000000
WS_FDONE = 0x002000
WS_EPOCH = 0x004000
WS_XS    = 0x008000
WS_CSG   = 0x010000
WS_STATS = 0x030000
WS_KVP   = 0x080000
WS_KVT   = 0x120000
WS_Z2N   = 0x200000
WS_Z1    = 0x600000
WS_PQ    = 0xA00000
WS_U     = 0xC00000
WS_DBG   = 0x1000000
WS_BYTES = 268435456
OOB = 0x7F000000

LDS_BYTES = 163840
SLOT = 8192
L_CSU = 12 * SLOT
L_CSB = 14 * SLOT
L_ST2 = 8 * SLOT + 2048
L_ZW  = 8 * SLOT
L_SS  = 8 * SLOT + 2048
L_GS  = 0
L_KVW = 10 * SLOT
B1_A, B1_B, B2_A, B2_B = 12, 16, 0, 4

LOG2E = 1.4426950408889634
K1 = -2.0 * LOG2E * math.sqrt(2.0 / math.pi)
K2 = K1 * 0.044715
def f2u(x): return struct.unpack("<I", struct.pack("<f", x))[0]
def hexf(x): return hex(f2u(x))

S_WG = 2
SRD_X = 4; SRD_W = 8; SRD_WS = 12; SRD_T = 16
P_WQKV = 20; P_WIN = 22
S_WAVE = 24; S_P = 25; S_E = 26; S_R = 27; S_C = 28; S_TAG = 29; S_ONES = 30
S_T0 = 31; S_T1 = 32; S_T2 = 33; S_T3 = 34
S_XB = 35; S_I = 36; S_NB = 37; S_B32 = 38; S_ECUR = 39
S_BCOL = 40; S_BMAT = 44; S_BTYP = 48; S_BIDX = 52
S_LA = 56; S_LB = 57; S_CUR = 58; S_WSTR = 59
S_SAVE = 60
S_SZQ = 62; S_SZI = 63
S_ROTK = 64
S_W64 = 72; S_WBASE = 73; S_M0W = 74; S_M0X = 75; S_PH = 76; S_NI = 77
S_BI = 78; S_BJ = 79
S_SPIN = 80; S_EPS6 = 81; S_CT = 82; S_CI = 83
S_CSO = 98; S_XTK = 99; S_PINIT = 100; S_W8 = 98; S_M0P = 99
S_TS = 84
P_WSP = 88; P_BSP = 90; P_WO = 92; P_WOUT = 94; P_OUT = 96
S_RHO = 40; S_TAU = 41; S_ZB = 42; S_ZCUR = 43; S_ZNXT = 44; S_SLOT = 45; S_SPB = 46; S_PSL = 47; S_PSIG = 48; S_ZLEFT = 49

V_TID = 0; V_L16 = 1; V_Z1O = 2; V_Z2O = 3; V_WA = 4; V_WDQ = 5; V_WDI = 6; V_WD = 7
V_LANE = 8; V_ST = 9
C_A = 10; C_B = 11; C_S = 12; C_R = 13; C_RL = 14; V_M0 = 15
XAUG = 16; WAUG = 20; I0 = 24; I1 = 28
V_WAA = 32; V_WAB = 33; V_FL = 34
V_M1 = 38; V_M2 = 39
V_XA = 40
V_XDE = 44; V_XDO = 45
CSA = 40
RET = 48; PK = 64; PP = 72; WF = 80; TMP = 96; ACC = 112; XF = 128
T_G1, T_G2, T_Q, T_K, T_V = 0, 1, 2, 3, 4

DBG = False
def stamp(a, k):
    if not DBG: return
    a(f"s_memtime s[{S_TS}:{S_TS+1}]"); a("s_waitcnt lgkmcnt(0)")
    a(f"v_writelane_b32 v{V_ST}, s{S_TS}, {k}")
def stamp_dyn(a, base):
    if not (DBG and 'fine' in OPT): return
    a(f"s_memtime s[{S_TS}:{S_TS+1}]"); a(f"s_add_u32 s{S_TS+2}, s{S_I}, {base}"); a("s_waitcnt lgkmcnt(0)")
    a(f"s_mov_b32 m0, s{S_TS+2}")
    a(f"v_writelane_b32 v{V_ST}, s{S_TS}, m0")
def stamp_reg(a, sreg, add):
    if not DBG: return
    a(f"s_memtime s[{S_TS}:{S_TS+1}]"); a(f"s_add_u32 s{S_TS+2}, s{sreg}, {add}"); a("s_waitcnt lgkmcnt(0)")
    a(f"s_mov_b32 m0, s{S_TS+2}")
    a(f"v_writelane_b32 v{V_ST}, s{S_TS}, m0")
def dump_stamps(a):
    if not DBG: return
    a(f"s_lshl_b32 s{S_T0}, s{S_WG}, 3"); a(f"s_add_u32 s{S_T0}, s{S_T0}, s{S_WAVE}"); a(f"s_lshl_b32 s{S_T0}, s{S_T0}, 8"); a(f"s_add_u32 s{S_T0}, s{S_T0}, {WS_DBG}")
    a(f"v_lshlrev_b32 v{TMP}, 2, v{V_LANE}")
    a(f"buffer_store_dword v{V_ST}, v{TMP}, s[{SRD_WS}:{SRD_WS+3}], s{S_T0} offen")

class VM:
    def __init__(self): self.ops = []
    def issue(self, tag, n=1): self.ops += [tag]*n
    def count_after(self, tags):
        last = max(i for i, t in enumerate(self.ops) if t in tags)
        return len(self.ops) - 1 - last
    def wait(self, a, tags, extra=""):
        n = self.count_after(tags)
        assert n <= 63
        a(f"s_waitcnt vmcnt({n}) {extra}".strip())

WS = f"s[{SRD_WS}:{SRD_WS+3}]"


V_TCH = 34
def setup_first(a, vm):
    a(f"s_cmp_ge_u32 s{S_WG}, 256")
    a("s_cbranch_scc1 L_end")
    a(f"s_load_dwordx2 s[{SRD_X}:{SRD_X+1}], s[0:1], 0")
    a(f"s_load_dwordx2 s[{P_WQKV}:{P_WQKV+1}], s[0:1], 8")
    a(f"s_load_dwordx2 s[{P_WIN}:{P_WIN+1}], s[0:1], 32")
    a(f"s_load_dwordx2 s[{SRD_WS}:{SRD_WS+1}], s[0:1], 80")
    a(f"s_load_dwordx2 s[{P_WSP}:{P_WSP+1}], s[0:1], 40")
    a(f"s_load_dwordx2 s[{P_BSP}:{P_BSP+1}], s[0:1], 48")
    a(f"s_load_dwordx2 s[{P_WO}:{P_WO+1}], s[0:1], 16")
    a(f"s_load_dwordx2 s[{P_WOUT}:{P_WOUT+1}], s[0:1], 56")
    a(f"s_load_dwordx2 s[{P_OUT}:{P_OUT+1}], s[0:1], 64")
    L = V_LANE; T = TMP
    a(f"v_lshrrev_b32 v{T}, 6, v0")
    a(f"v_and_b32 v{L}, 63, v0")
    a(f"v_readfirstlane_b32 s{S_WAVE}, v{T}")
    a(f"s_lshr_b32 s{S_T1}, s{S_WG}, 3")
    a(f"s_lshr_b32 s{S_T0}, s{S_WG}, 1"); a(f"s_and_b32 s{S_T0}, s{S_T0}, 3")
    a(f"s_and_b32 s{S_T3}, s{S_WG}, 1")
    a(f"s_lshl_b32 s{S_R}, s{S_T3}, 3"); a(f"s_and_b32 s{S_T2}, s{S_T1}, 7"); a(f"s_add_u32 s{S_R}, s{S_R}, s{S_T2}")
    a(f"s_lshr_b32 s{S_T2}, s{S_T1}, 3"); a(f"s_lshl_b32 s{S_C}, s{S_T2}, 2"); a(f"s_add_u32 s{S_C}, s{S_C}, s{S_T0}")
    a(f"s_lshl_b32 s{S_BI}, s{S_T0}, 3"); a(f"s_and_b32 s{S_T2}, s{S_T1}, 7"); a(f"s_add_u32 s{S_BI}, s{S_BI}, s{S_T2}")
    a(f"s_lshl_b32 s{S_BJ}, s{S_T3}, 2"); a(f"s_lshr_b32 s{S_T2}, s{S_T1}, 3"); a(f"s_add_u32 s{S_BJ}, s{S_BJ}, s{S_T2}")
    a(f"s_and_b32 s{S_P}, s{S_WAVE}, 3"); a(f"s_lshr_b32 s{S_E}, s{S_WAVE}, 2")
    a(f"s_mov_b32 s{S_SZQ}, {512*1536*2}"); a(f"s_mov_b32 s{S_SZI}, {512*1792*2}")
    lx, ly, ld = "L_tX", "L_tY", "L_tdone"
    def blk(b, col, mat, typ, idx):
        a(col) if isinstance(col, str) else [a(x) for x in col]
        a(f"s_mov_b32 s{S_BMAT+b}, {mat}"); a(f"s_mov_b32 s{S_BTYP+b}, {typ}"); a(f"s_mov_b32 s{S_BIDX+b}, s{idx}")
    a(f"s_cmp_lt_u32 s{S_C}, 8"); a(f"s_cbranch_scc1 {lx}")
    a(f"s_cmp_lt_u32 s{S_C}, 14"); a(f"s_cbranch_scc1 {ly}")
    a(f"s_sub_u32 s{S_T0}, s{S_C}, 8")
    blk(0, f"s_lshl_b32 s{S_BCOL}, s{S_T0}, 7", 0, T_Q, S_T0)
    a(f"s_sub_u32 s{S_T0}, s{S_C}, 14"); a(f"s_lshl_b32 s{S_T0}, s{S_T0}, 1"); a(f"s_add_u32 s{S_T0}, s{S_T0}, 6")
    blk(1, f"s_lshl_b32 s{S_BCOL+1}, s{S_T0}, 7", 1, T_G1, S_T0)
    a(f"s_add_u32 s{S_T0}, s{S_T0}, 1")
    blk(2, f"s_lshl_b32 s{S_BCOL+2}, s{S_T0}, 7", 1, T_G1, S_T0)
    blk(3, f"s_mov_b32 s{S_BCOL+3}, s{S_BCOL+2}", 1, T_G1, S_T0)
    a(f"s_mov_b32 s{S_NB}, 3"); a(f"s_branch {ld}")
    a.label(ly)
    blk(0, [f"s_lshl_b32 s{S_BCOL}, s{S_C}, 7", f"s_add_u32 s{S_BCOL}, s{S_BCOL}, 1792"], 1, T_G2, S_C)
    a(f"s_sub_u32 s{S_T0}, s{S_C}, 8")
    blk(1, f"s_lshl_b32 s{S_BCOL+1}, s{S_T0}, 7", 0, T_Q, S_T0)
    blk(2, f"s_lshl_b32 s{S_BCOL+2}, s{S_T0}, 7", 1, T_G1, S_T0)
    blk(3, f"s_mov_b32 s{S_BCOL+3}, s{S_BCOL+2}", 1, T_G1, S_T0)
    a(f"s_mov_b32 s{S_NB}, 3"); a(f"s_branch {ld}")
    a.label(lx)
    blk(0, [f"s_lshl_b32 s{S_BCOL}, s{S_C}, 7", f"s_add_u32 s{S_BCOL}, s{S_BCOL}, 1792"], 1, T_G2, S_C)
    a(f"s_lshl_b32 s{S_T0}, s{S_C}, 7")
    blk(1, f"s_add_u32 s{S_BCOL+1}, s{S_T0}, 1024", 0, T_K, S_C)
    blk(2, f"s_add_u32 s{S_BCOL+2}, s{S_T0}, 2048", 0, T_V, S_C)
    a(f"s_lshr_b32 s{S_T0}, s{S_C}, 1"); a(f"s_add_u32 s{S_T0}, s{S_T0}, 10")
    blk(3, f"s_lshl_b32 s{S_BCOL+3}, s{S_T0}, 7", 1, T_G1, S_T0)
    a(f"s_sub_u32 s{S_NB}, 4, s{S_E}")
    a.label(ld)
    a("s_waitcnt lgkmcnt(0)")
    if 'pst' in OPT: stamp(a, 16)
    a(f"s_load_dword s{S_TAG}, s[{SRD_WS}:{SRD_WS+1}], {WS_EPOCH}")
    a(f"s_and_b32 s{SRD_X+1}, s{SRD_X+1}, 0xffff"); a(f"s_mov_b32 s{SRD_X+2}, {2048*512*2}"); a(f"s_mov_b32 s{SRD_X+3}, 0x20000")
    a(f"s_cmp_ge_u32 s{S_WAVE}, 4"); a("s_cbranch_scc1 L_tch_x")
    sel_block(a, S_P, S_T2, S_T1)
    set_wsrd_regs(a, S_T2, S_T1, novgpr=True)
    a(f"v_mul_lo_u32 v{T}, v{L}, s{S_WSTR}")
    a(f"s_and_b32 s{S_T0}, s{S_R}, 7"); a(f"s_mul_i32 s{S_T0}, s{S_T0}, s{S_W64}"); a(f"s_add_u32 s{S_T0}, s{S_T0}, s{S_T1}")
    a(f"buffer_load_dword v{V_TCH}, v{T}, s[{SRD_W}:{SRD_W+3}], s{S_T0} offen")
    a("s_branch L_tch_c")
    a.label("L_tch_x")
    a(f"v_lshrrev_b32 v{T}, 3, v{L}"); a(f"v_and_b32 v{T+1}, 7, v{L}"); a(f"v_lshlrev_b32 v{T+1}, 7, v{T+1}"); a(f"v_lshl_add_u32 v{T}, v{T}, 10, v{T+1}")
    a(f"s_lshr_b32 s{S_T0}, s{S_C}, 2"); a(f"s_lshl_b32 s{S_T0}, s{S_T0}, 5"); a(f"s_lshl_b32 s{S_T1}, s{S_P}, 3"); a(f"s_add_u32 s{S_T0}, s{S_T0}, s{S_T1}")
    a(f"s_lshl_b32 s{S_T1}, s{S_R}, 7"); a(f"s_add_u32 s{S_T0}, s{S_T0}, s{S_T1}"); a(f"s_lshl_b32 s{S_T0}, s{S_T0}, 10")
    a(f"buffer_load_dword v{V_TCH}, v{T}, s[{SRD_X}:{SRD_X+3}], s{S_T0} offen")
    a.label("L_tch_c")
    a(f"s_getpc_b64 s[{SRD_T}:{SRD_T+1}]")
    a.label("L_pc0")
    a(f"s_and_b32 s{SRD_T+1}, s{SRD_T+1}, 0xffff"); a(f"s_mov_b32 s{SRD_T+2}, L_codeend-L_pc0"); a(f"s_mov_b32 s{SRD_T+3}, 0x20000")
    a(f"v_lshlrev_b32 v{T}, 7, v{L}"); a(f"s_lshr_b32 s{S_T0}, s{S_WG}, 3"); a(f"s_lshl_b32 s{S_T0}, s{S_T0}, 10")
    a(f"s_cmp_lg_u32 s{S_WAVE}, 0"); a(f"s_cselect_b32 s{S_T0}, {OOB}, s{S_T0}")
    a(f"s_mov_b64 exec, 0xff")
    a(f"buffer_load_dword v{V_TCH+1}, v{T}, s[{SRD_T}:{SRD_T+3}], s{S_T0} offen")
    a(f"s_mov_b64 exec, -1")
    vm.issue("tch", 2)
    if 'pst' in OPT: stamp(a, 17)
    a(f"v_lshlrev_b32 v{V_L16}, 4, v{L}")
    a(f"v_lshrrev_b32 v{T}, 3, v{L}"); a(f"v_and_b32 v{T+1}, 7, v{L}"); a(f"v_lshrrev_b32 v{T+2}, 1, v{T}")
    a(f"v_xor_b32 v{T+3}, v{T+1}, v{T+2}"); a(f"v_lshlrev_b32 v{T+3}, 4, v{T+3}")
    a(f"v_lshl_add_u32 v{V_XDE}, v{T}, 10, v{T+3}"); a(f"v_xor_b32 v{V_XDO}, 64, v{V_XDE}")
    a(f"v_and_b32 v{T+2}, 1, v{T+2}"); a(f"v_lshlrev_b32 v{T+2}, 2, v{T+2}"); a(f"v_xor_b32 v{T+2}, v{T+1}, v{T+2}"); a(f"v_lshlrev_b32 v{T+2}, 4, v{T+2}")
    a(f"v_mul_u32_u24 v{T+3}, 3072, v{T}"); a(f"v_add_u32 v{V_WDQ}, v{T+3}, v{T+2}")
    a(f"v_mul_u32_u24 v{T+3}, 3584, v{T}"); a(f"v_add_u32 v{V_WDI}, v{T+3}, v{T+2}")
    a(f"s_mov_b32 s{S_ONES}, 0x3f803f80")
    a(f"s_lshl_b32 s{S_B32}, s{S_R}, 2"); a(f"s_add_u32 s{S_B32}, s{S_B32}, s{S_P}")
    a(f"s_lshl_b32 s{S_XB}, s{S_R}, 17"); a(f"s_lshl_b32 s{S_T0}, s{S_WAVE}, 14"); a(f"s_add_u32 s{S_XB}, s{S_XB}, s{S_T0}")
    a(f"s_lshr_b32 s{S_T0}, s{S_C}, 2"); a(f"s_lshl_b32 s{S_T0}, s{S_T0}, 1"); a(f"s_add_u32 s{S_T0}, s{S_T0}, s{S_R}")
    for m in range(8):
        a(f"s_add_u32 s{S_ROTK+m}, s{S_T0}, {m}"); a(f"s_and_b32 s{S_ROTK+m}, s{S_ROTK+m}, 7")
    a(f"s_lshl_b32 s{S_M0W}, s{S_WAVE}, 10"); a(f"s_lshl_b32 s{S_M0X}, s{S_WAVE}, 11")

def sel_block(a, sidx, dmat, dcol):
    a(f"s_mov_b32 s{dmat}, s{S_BMAT}"); a(f"s_mov_b32 s{dcol}, s{S_BCOL}")
    for b in (1, 2, 3):
        a(f"s_cmp_eq_u32 s{sidx}, {b}"); a(f"s_cselect_b32 s{dmat}, s{S_BMAT+b}, s{dmat}"); a(f"s_cselect_b32 s{dcol}, s{S_BCOL+b}, s{dcol}")

def finish_ws_srd(a):
    a("s_waitcnt lgkmcnt(0)")
    a(f"s_and_b32 s{SRD_WS+1}, s{SRD_WS+1}, 0xffff"); a(f"s_mov_b32 s{SRD_WS+2}, {WS_BYTES}"); a(f"s_mov_b32 s{SRD_WS+3}, 0x20000")
    a(f"s_add_u32 s{S_TAG}, s{S_TAG}, 1")

def set_wsrd_regs(a, mat, col, novgpr=False):
    a(f"s_cmp_eq_u32 s{mat}, 0")
    a(f"s_cselect_b32 s{SRD_W}, s{P_WQKV}, s{P_WIN}")
    a(f"s_cselect_b32 s{SRD_W+1}, s{P_WQKV+1}, s{P_WIN+1}")
    a(f"s_cselect_b32 s{SRD_W+2}, s{S_SZQ}, s{S_SZI}")
    a(f"s_mov_b32 s{SRD_W+3}, 0x20000")
    if not novgpr:
        a("s_cselect_b64 vcc, -1, 0")
        a(f"v_cndmask_b32 v{V_WD}, v{V_WDI}, v{V_WDQ}, vcc")
    a(f"s_lshl_b32 s{S_WSTR}, s{mat}, 9"); a(f"s_add_u32 s{S_WSTR}, s{S_WSTR}, 3072")
    a(f"s_lshl_b32 s{S_W64}, s{S_WSTR}, 6")
    a(f"s_mul_i32 s{S_WBASE}, s{S_WSTR}, s{S_WAVE}"); a(f"s_lshl_b32 s{S_WBASE}, s{S_WBASE}, 3")
    a(f"s_add_u32 s{S_WBASE}, s{S_WBASE}, s{col}")
def set_wsrd(a, b): set_wsrd_regs(a, S_BMAT+b, S_BCOL+b)

def w_dma(a, slab, slot):
    a(f"s_mul_i32 s{S_T0}, s{S_ROTK+slab}, s{S_W64}")
    a(f"s_add_u32 m0, s{S_M0W}, {slot*SLOT}")
    a(f"s_add_u32 s{S_T0}, s{S_T0}, s{S_WBASE}")
    a(f"buffer_load_dwordx4 v{V_WD}, s[{SRD_W}:{SRD_W+3}], s{S_T0} offen lds")
def set_wsrd_p1(a, b):
    set_wsrd(a, b)
    a(f"s_lshl_b32 s{S_T0}, s{S_P}, 4"); a(f"s_mul_i32 s{S_WBASE}, s{S_WSTR}, s{S_T0}"); a(f"s_add_u32 s{S_WBASE}, s{S_WBASE}, s{S_BCOL+b}")
    a(f"s_lshl_b32 s{S_W8}, s{S_WSTR}, 3"); a(f"s_lshl_b32 s{S_M0P}, s{S_P}, 11")
def w_dma2(a, slab, slot):
    a(f"s_mul_i32 s{S_T0}, s{S_ROTK+slab}, s{S_W64}")
    a(f"s_add_u32 m0, s{S_M0P}, {slot*SLOT}")
    a(f"s_add_u32 s{S_T0}, s{S_T0}, s{S_WBASE}")
    a(f"buffer_load_dwordx4 v{V_WD}, s[{SRD_W}:{SRD_W+3}], s{S_T0} offen lds")
    a(f"s_add_u32 m0, s{S_M0P}, {slot*SLOT+1024}")
    a(f"s_add_u32 s{S_T0}, s{S_T0}, s{S_W8}")
    a(f"buffer_load_dwordx4 v{V_WD}, s[{SRD_W}:{SRD_W+3}], s{S_T0} offen lds")
def x_dma(a, slab, slot):
    a(f"s_lshl_b32 s{S_T0}, s{S_ROTK+slab}, 7")
    a(f"s_add_u32 m0, s{S_M0X}, {slot*SLOT}")
    a(f"s_add_u32 s{S_T0}, s{S_T0}, s{S_XB}")
    a(f"buffer_load_dwordx4 v{V_XDE}, s[{SRD_X}:{SRD_X+3}], s{S_T0} offen lds")
    a(f"s_add_u32 m0, s{S_M0X}, {slot*SLOT+1024}")
    a(f"s_add_u32 s{S_T0}, s{S_T0}, 8192")
    a(f"buffer_load_dwordx4 v{V_XDO}, s[{SRD_X}:{SRD_X+3}], s{S_T0} offen lds")

def issue_initial(a, vm):
    T = TMP
    set_wsrd(a, 0)
    for sl in range(2):
        x_dma(a, sl, 2*sl); vm.issue(f"x{sl}", 2)
        w_dma(a, sl, 8+sl); vm.issue(f"w{sl}")
    a(f"s_lshr_b32 s{S_T3}, s{S_R}, 2")
    sel_block(a, S_T3, S_T2, S_T1)
    set_wsrd_regs(a, S_T2, S_T1)
    a(f"s_mul_i32 s{S_CSO}, s{S_T2}, 24"); a(f"s_lshr_b32 s{S_T0}, s{S_T1}, 7"); a(f"s_add_u32 s{S_CSO}, s{S_CSO}, s{S_T0}"); a(f"s_lshl_b32 s{S_CSO}, s{S_CSO}, 2")
    a(f"s_and_b32 s{S_T0}, s{S_R}, 3"); a(f"s_add_u32 s{S_CSO}, s{S_CSO}, s{S_T0}"); a(f"s_lshl_b32 s{S_CSO}, s{S_CSO}, 9"); a(f"s_add_u32 s{S_CSO}, s{S_CSO}, {WS_CSG}")
    a(f"s_lshl_b32 s{S_T0}, s{S_T0}, 7"); a(f"s_lshl_b32 s{S_T2}, s{S_WAVE}, 4"); a(f"s_add_u32 s{S_T0}, s{S_T0}, s{S_T2}")
    a(f"s_mul_i32 s{S_T0}, s{S_T0}, s{S_WSTR}"); a(f"s_add_u32 s{S_T0}, s{S_T0}, s{S_T1}")
    a(f"s_add_u32 m0, s{S_M0X}, {L_CSU}")
    a(f"s_lshl_b32 s{S_T2}, s{S_WSTR}, 3")
    a(f"buffer_load_dwordx4 v{V_WD}, s[{SRD_W}:{SRD_W+3}], s{S_T0} offen lds"); vm.issue("cu")
    a(f"s_add_u32 m0, s{S_M0X}, {L_CSU+1024}")
    a(f"s_add_u32 s{S_T0}, s{S_T0}, s{S_T2}")
    a(f"buffer_load_dwordx4 v{V_WD}, s[{SRD_W}:{SRD_W+3}], s{S_T0} offen lds"); vm.issue("cu")
    a(f"s_lshl_b32 s{S_XTK}, s{S_R}, 7"); a(f"s_lshl_b32 s{S_T0}, s{S_C}, 3"); a(f"s_add_u32 s{S_XTK}, s{S_XTK}, s{S_T0}"); a(f"s_add_u32 s{S_XTK}, s{S_XTK}, s{S_WAVE}")
    a(f"s_lshl_b32 s{S_T0}, s{S_XTK}, 10")
    a(f"buffer_load_dwordx4 v[{PP}:{PP+3}], v{V_L16}, s[{SRD_X}:{SRD_X+3}], s{S_T0} offen"); vm.issue("xr")
    set_wsrd(a, 0)

def issue_clears_early(a, vm):
    T = PP
    for d in range(4): a(f"v_mov_b32 v{T+d}, -1")
    a(f"s_lshl_b32 s{S_T0}, s{S_C}, 2"); a(f"s_lshr_b32 s{S_T1}, s{S_WAVE}, 1"); a(f"s_add_u32 s{S_T0}, s{S_T0}, s{S_T1}"); a(f"s_lshl_b32 s{S_T0}, s{S_T0}, 6")
    a(f"s_lshl_b32 s{S_T1}, s{S_R}, 2"); a(f"s_add_u32 s{S_T0}, s{S_T0}, s{S_T1}"); a(f"s_and_b32 s{S_T1}, s{S_WAVE}, 1"); a(f"s_lshl_b32 s{S_T1}, s{S_T1}, 1")
    a(f"s_add_u32 s{S_T0}, s{S_T0}, s{S_T1}"); a(f"s_lshl_b32 s{S_T0}, s{S_T0}, 10"); a(f"s_add_u32 s{S_T0}, s{S_T0}, {WS_Z2N}")
    a(f"s_cmp_ge_u32 s{S_C}, 14"); a(f"s_cselect_b32 s{S_T0}, {OOB}, s{S_T0}")
    a(f"buffer_store_dwordx4 v[{T}:{T+3}], v{V_L16}, {WS}, s{S_T0} offen sc1"); a(f"buffer_store_dwordx4 v[{T}:{T+3}], v{V_L16}, {WS}, s{S_T0} offen offset:1024 sc1")
    a(f"s_lshl_b32 s{S_T0}, s{S_R}, 4"); a(f"s_add_u32 s{S_T0}, s{S_T0}, s{S_C}"); a(f"s_lshl_b32 s{S_T0}, s{S_T0}, 10"); a(f"s_add_u32 s{S_T0}, s{S_T0}, {WS_STATS}")
    a(f"s_cmp_lg_u32 s{S_WAVE}, 0"); a(f"s_cselect_b32 s{S_T0}, {OOB}, s{S_T0}")
    a(f"buffer_store_dwordx4 v[{T}:{T+3}], v{V_L16}, {WS}, s{S_T0} offen sc1")
    vm.issue("clr", 3)

def issue_clears_late(a):
    T = PP
    for d in range(4): a(f"v_mov_b32 v{T+d}, -1")
    a(f"s_mul_i32 s{S_T0}, s{S_BI}, 112"); a(f"s_mul_i32 s{S_T1}, s{S_BJ}, 7"); a(f"s_add_u32 s{S_T0}, s{S_T0}, s{S_T1}")
    a(f"s_lshl_b32 s{S_T3}, s{S_P}, 2")
    for k in range(4):
        a(f"s_add_u32 s{S_T1}, s{S_T3}, {k}")
        a(f"s_cmp_ge_u32 s{S_T1}, 7"); a(f"s_cselect_b32 s{S_T2}, 49, 0"); a(f"s_add_u32 s{S_T2}, s{S_T2}, s{S_T1}")
        a(f"s_add_u32 s{S_T2}, s{S_T2}, s{S_T0}"); a(f"s_lshl_b32 s{S_T2}, s{S_T2}, 10"); a(f"s_add_u32 s{S_T2}, s{S_T2}, {WS_U}")
        if k >= 2:
            a(f"s_lshl_b32 s{S_SAVE}, s{S_WG}, 10"); a(f"s_add_u32 s{S_SAVE}, s{S_SAVE}, {WS_KVT}")
            a(f"s_cmp_ge_u32 s{S_WG}, 32"); a(f"s_cselect_b32 s{S_SAVE}, {OOB}, s{S_SAVE}")
            if k == 3: a(f"s_mov_b32 s{S_SAVE}, {OOB}")
            a(f"s_cmp_eq_u32 s{S_P}, 3"); a(f"s_cselect_b32 s{S_T2}, s{S_SAVE}, s{S_T2}")
        a(f"buffer_store_dwordx4 v[{T}:{T+3}], v{V_L16}, {WS}, s{S_T2} offen sc1")

def touch_wsp(a, half):
    T = V_M1
    a(f"s_and_b32 s{S_T0}, s{S_BI}, 7"); a(f"s_lshl_b32 s{S_T0}, s{S_T0}, 2"); a(f"s_add_u32 s{S_T0}, s{S_T0}, {16*half}")
    a(f"v_and_b32 v{T}, 15, v{V_LANE}"); a(f"v_add_u32 v{T}, s{S_T0}, v{T}"); a(f"v_and_b32 v{T}, 31, v{T}"); a(f"v_lshlrev_b32 v{T}, 7, v{T}")
    a(f"v_lshrrev_b32 v{T+1}, 4, v{V_LANE}"); a(f"v_lshl_add_u32 v{T}, v{T+1}, 12, v{T}")
    srd_from(a, SRD_T, P_WSP, 2048*2048*2)
    a(f"s_lshl_b32 s{S_T0}, s{S_BI}, 6"); a(f"s_and_b32 s{S_T1}, s{S_BJ}, 1"); a(f"s_lshl_b32 s{S_T1}, s{S_T1}, 5"); a(f"s_add_u32 s{S_T0}, s{S_T0}, s{S_T1}")
    a(f"s_lshl_b32 s{S_T1}, s{S_P}, 3"); a(f"s_add_u32 s{S_T0}, s{S_T0}, s{S_T1}"); a(f"s_lshl_b32 s{S_T0}, s{S_T0}, 12")
    a(f"buffer_load_dword v{V_TCH}, v{T}, s[{SRD_T}:{SRD_T+3}], s{S_T0} offen")
    a(f"s_add_u32 s{S_T0}, s{S_T0}, {4*4096}")
    a(f"buffer_load_dword v{V_TCH+1}, v{T}, s[{SRD_T}:{SRD_T+3}], s{S_T0} offen")

def touch_cw(a):
    T = V_M1
    a(f"v_lshlrev_b32 v{T}, 10, v{V_LANE}")
    a(f"s_cmp_eq_u32 s{S_P}, 3"); a("s_cbranch_scc1 L_tcw_d")
    a(f"s_cmp_eq_u32 s{S_P}, 2"); a("s_cbranch_scc1 L_tcw_o")
    srd_from(a, SRD_T, P_WOUT, 896*512*2)
    a(f"s_and_b32 s{S_T0}, s{S_BI}, 7"); a(f"s_mul_i32 s{S_T0}, s{S_T0}, {112*1024}")
    a(f"s_lshl_b32 s{S_T1}, s{S_P}, 1"); a(f"s_sub_u32 s{S_T1}, s{S_BJ}, s{S_T1}"); a(f"s_lshl_b32 s{S_T1}, s{S_T1}, 7"); a(f"s_add_u32 s{S_T0}, s{S_T0}, s{S_T1}")
    a(f"buffer_load_dword v{V_TCH+2}, v{T}, s[{SRD_T}:{SRD_T+3}], s{S_T0} offen"); a(f"s_add_u32 s{S_T0}, s{S_T0}, {56*1024}")
    a(f"buffer_load_dword v{V_TCH+3}, v{T}, s[{SRD_T}:{SRD_T+3}], s{S_T0} offen")
    a("s_branch L_tcw_d")
    a.label("L_tcw_o")
    srd_from(a, SRD_T, P_WO, 512*512*2)
    a(f"s_and_b32 s{S_T0}, s{S_BI}, 7"); a(f"s_lshl_b32 s{S_T0}, s{S_T0}, 16"); a(f"s_lshl_b32 s{S_T1}, s{S_BJ}, 7"); a(f"s_add_u32 s{S_T0}, s{S_T0}, s{S_T1}")
    a(f"buffer_load_dword v{V_TCH+2}, v{T}, s[{SRD_T}:{SRD_T+3}], s{S_T0} offen"); a(f"s_sub_u32 s{S_T0}, s{S_T0}, 256")
    a(f"buffer_load_dword v{V_TCH+3}, v{T}, s[{SRD_T}:{SRD_T+3}], s{S_T0} offen")
    a.label("L_tcw_d")

def setup_lane_consts(a):
    L = V_LANE; T = TMP + 4
    a(f"v_and_b32 v{T}, 31, v{L}"); a(f"v_lshrrev_b32 v{T+1}, 5, v{L}")
    a(f"v_lshrrev_b32 v{T+2}, 1, v{T}"); a(f"v_and_b32 v{T+2}, 7, v{T+2}")
    a(f"v_xor_b32 v{T+3}, v{T+1}, v{T+2}"); a(f"v_lshlrev_b32 v{T+3}, 4, v{T+3}")
    a(f"s_lshl_b32 s{S_T0}, s{S_P}, 12")
    a(f"v_lshl_add_u32 v{T+4}, v{T}, 7, v{T+3}"); a(f"v_add_u32 v{V_XA}, s{S_T0}, v{T+4}")
    for kk in range(1, 4): a(f"v_xor_b32 v{V_XA+kk}, {kk<<5}, v{V_XA}")
    a(f"v_lshrrev_b32 v{T}, 2, v{L}"); a(f"v_and_b32 v{T}, 3, v{T}")
    a(f"v_lshrrev_b32 v{T+1}, 5, v{L}"); a(f"v_lshl_add_u32 v{T+2}, v{T+1}, 3, v{T}")
    a(f"v_lshrrev_b32 v{T+3}, 4, v{L}"); a(f"v_and_b32 v{T+3}, 1, v{T+3}")
    a(f"v_lshrrev_b32 v{T+4}, 1, v{L}"); a(f"v_and_b32 v{T+4}, 1, v{T+4}"); a(f"v_lshl_add_u32 v{T+4}, v{T+3}, 1, v{T+4}")
    a(f"v_lshrrev_b32 v{T+5}, 1, v{T}"); a(f"v_lshlrev_b32 v{T+5}, 2, v{T+5}"); a(f"v_xor_b32 v{T+4}, v{T+4}, v{T+5}")
    a(f"v_lshlrev_b32 v{T+4}, 4, v{T+4}"); a(f"v_lshl_add_u32 v{T+4}, v{T+2}, 7, v{T+4}")
    a(f"v_and_b32 v{T+5}, 1, v{L}"); a(f"v_lshl_add_u32 v{V_WA}, v{T+5}, 3, v{T+4}")
    a(f"v_lshrrev_b32 v{T}, 4, v{L}"); a(f"v_and_b32 v{T+1}, 1, v{T}"); a(f"v_lshlrev_b32 v{T+1}, 1, v{T+1}")
    a(f"v_lshrrev_b32 v{T}, 1, v{T}"); a(f"v_or_b32 v{T}, v{T}, v{T+1}")
    a(f"v_and_b32 v{T+1}, 15, v{L}"); a(f"v_lshl_add_u32 v{T}, v{T}, 4, v{T+1}"); a(f"v_lshlrev_b32 v{V_Z1O}, 4, v{T}")
    a(f"v_lshrrev_b32 v{T}, 4, v{L}"); a(f"v_and_b32 v{T}, 1, v{T}"); a(f"v_lshlrev_b32 v{T}, 16, v{T}")
    a(f"v_lshrrev_b32 v{T+1}, 5, v{L}"); a(f"v_and_b32 v{T+2}, 15, v{L}"); a(f"v_lshl_add_u32 v{T+1}, v{T+1}, 4, v{T+2}")
    a(f"v_lshl_add_u32 v{V_Z2O}, v{T+1}, 4, v{T}")
    a(f"v_and_b32 v{T}, 15, v{L}"); a(f"v_lshrrev_b32 v{T+1}, 2, v{T}"); a(f"v_and_b32 v{T+1}, 1, v{T+1}"); a(f"v_lshrrev_b32 v{T+2}, 5, v{L}")
    a(f"v_and_b32 v{T+3}, 3, v{T}"); a(f"v_lshrrev_b32 v{T+4}, 3, v{T}"); a(f"v_lshl_add_u32 v{T+3}, v{T+4}, 2, v{T+3}")
    a(f"v_and_b32 v{T+4}, 1, v{T+3}"); a(f"v_lshlrev_b32 v{T+4}, 4, v{T+4}")
    a(f"v_mov_b32 v{T+5}, 0x3f80"); a(f"v_lshlrev_b32 v{T+5}, v{T+4}, v{T+5}"); a(f"v_lshrrev_b32 v{T+3}, 1, v{T+3}")
    a(f"v_cmp_eq_u32 vcc, v{T+1}, v{T+2}"); a(f"v_cndmask_b32 v{T+5}, 0, v{T+5}, vcc")
    a(f"v_lshrrev_b32 v{T+6}, 4, v{L}"); a(f"v_and_b32 v{T+6}, 1, v{T+6}"); a(f"v_lshl_add_u32 v{T+6}, v{T+6}, 2, v{T+3}")
    for d in range(8):
        a(f"v_cmp_eq_u32 vcc, {d}, v{T+6}"); a(f"v_cndmask_b32 v{I0+d}, 0, v{T+5}, vcc")
    a(f"v_mov_b32 v{XAUG+2}, 0"); a(f"v_mov_b32 v{XAUG+3}, 0"); a(f"v_mov_b32 v{WAUG+2}, 0"); a(f"v_mov_b32 v{WAUG+3}, 0")

def dpp_sum64(a, regs):
    for sh in (1, 2, 4, 8):
        for r in regs: a(f"v_add_f32_dpp v{r}, v{r}, v{r} row_shr:{sh} row_mask:0xf bank_mask:0xf bound_ctrl:0")
    for r in regs: a(f"v_add_f32_dpp v{r}, v{r}, v{r} row_bcast:15 row_mask:0xa bank_mask:0xf")
    for r in regs: a(f"v_add_f32_dpp v{r}, v{r}, v{r} row_bcast:31 row_mask:0xc bank_mask:0xf")

def phase0a(a, vm):
    T = PK
    F = RET
    S, Q = T, T+1
    a(f"s_lshl_b32 s{S_T0}, s{S_E}, 6"); a(f"v_xor_b32 v{T+2}, s{S_T0}, v{V_WA}")
    a(f"s_lshl_b32 s{S_T0}, s{S_P}, 12"); a(f"s_add_u32 s{S_T0}, s{S_T0}, {L_CSU}"); a(f"v_add_u32 v{T+2}, s{S_T0}, v{T+2}")
    for k in range(2):
        a(f"ds_read_b64_tr_b16 v[{F+4*k}:{F+4*k+1}], v{T+2} offset:{2048*k}")
        a(f"ds_read_b64_tr_b16 v[{F+4*k+2}:{F+4*k+3}], v{T+2} offset:{2048*k+512}")
    a(f"v_mov_b32 v{S}, 0"); a(f"v_mov_b32 v{Q}, 0")
    for d in range(4):
        a(f"v_dot2c_f32_bf16 v{S}, s{S_ONES}, v{PP+d}"); a(f"v_dot2c_f32_bf16 v{Q}, v{PP+d}, v{PP+d}")
    dpp_sum64(a, [S, Q])
    a(f"v_mul_f32 v{S}, {hexf(1/512)}, v{S}"); a(f"v_mul_f32 v{Q}, {hexf(1/512)}, v{Q}")
    a(f"v_fma_f32 v{Q}, -v{S}, v{S}, v{Q}"); a(f"v_max_f32 v{Q}, 0, v{Q}"); a(f"v_add_f32 v{Q}, {hexf(1e-5)}, v{Q}")
    a(f"v_rsq_f32 v{T+5}, v{Q}")
    a(f"v_sub_f32 v{T+4}, 0, v{S}")
    a(f"v_mov_b32 v{T+6}, s{S_TAG}"); a(f"v_mov_b32 v{T+7}, s{S_TAG}")
    a(f"s_lshl_b32 s{S_T0}, s{S_XTK}, 4"); a(f"s_add_u32 s{S_T0}, s{S_T0}, {WS_XS}")
    a(f"v_mov_b32 v{T+3}, 0")
    a(f"v_cmp_eq_u32 vcc, 63, v{V_LANE}"); a(f"s_and_saveexec_b64 s[{S_SAVE}:{S_SAVE+1}], vcc")
    a(f"buffer_store_dwordx4 v[{T+4}:{T+7}], v{T+3}, {WS}, s{S_T0} offen sc1"); vm.issue("xs")
    a(f"s_mov_b64 exec, s[{S_SAVE}:{S_SAVE+1}]")
    a(f"v_mov_b32 v{S}, 0"); a(f"v_mov_b32 v{Q}, 0")
    a("s_waitcnt lgkmcnt(0)")
    for d in range(8): a(f"v_dot2c_f32_bf16 v{S+(d&1)}, s{S_ONES}, v{F+d}")
    a(f"v_add_f32 v{S}, v{S}, v{Q}")
    a(f"v_and_b32 v{T+2}, 31, v{V_LANE}"); a(f"v_lshlrev_b32 v{T+2}, 5, v{T+2}")
    a(f"s_lshl_b32 s{S_T0}, s{S_E}, 10"); a(f"s_add_u32 s{S_T0}, s{S_T0}, {L_CSB}"); a(f"v_add_u32 v{V_M0}, s{S_T0}, v{T+2}")
    a(f"v_lshrrev_b32 v{T+3}, 5, v{V_LANE}"); a(f"v_lshl_add_u32 v{T+2}, v{T+3}, 2, v{V_M0}")
    a(f"s_lshl_b32 s{S_T0}, s{S_P}, 3"); a(f"v_add_u32 v{T+2}, s{S_T0}, v{T+2}")
    a(f"ds_write_b32 v{T+2}, v{S}")

def phase0b(a, vm):
    T = PK; F = RET
    a(f"ds_read_b128 v[{F}:{F+3}], v{V_M0}"); a(f"ds_read_b128 v[{F+4}:{F+7}], v{V_M0} offset:16")
    a(f"s_lshl_b32 s{S_T1}, s{S_E}, 8"); a(f"s_add_u32 s{S_T0}, s{S_CSO}, s{S_T1}")
    a(f"s_cmp_lg_u32 s{S_P}, 0"); a(f"s_cselect_b32 s{S_T0}, {OOB}, s{S_T0}")
    a(f"v_and_b32 v{T+6}, 31, v{V_LANE}"); a(f"v_lshlrev_b32 v{T+6}, 3, v{T+6}")
    a("s_waitcnt lgkmcnt(0)")
    a(f"v_add_f32 v{F}, v{F}, v{F+1}"); a(f"v_add_f32 v{F+2}, v{F+2}, v{F+3}"); a(f"v_add_f32 v{F+4}, v{F+4}, v{F+5}"); a(f"v_add_f32 v{F+6}, v{F+6}, v{F+7}")
    a(f"v_add_f32 v{F}, v{F}, v{F+2}"); a(f"v_add_f32 v{F+4}, v{F+4}, v{F+6}"); a(f"v_add_f32 v{F}, v{F}, v{F+4}")
    a(f"v_mov_b32 v{F+1}, s{S_TAG}")
    a(f"v_cmp_gt_u32 vcc, 32, v{V_LANE}"); a(f"s_and_saveexec_b64 s[{S_SAVE}:{S_SAVE+1}], vcc")
    a(f"buffer_store_dwordx2 v[{F}:{F+1}], v{T+6}, {WS}, s{S_T0} offen sc1"); vm.issue("cs")
    a(f"s_mov_b64 exec, s[{S_SAVE}:{S_SAVE+1}]")

def spin_check(a, out):
    a(f"s_add_u32 s{S_SPIN}, s{S_SPIN}, 1"); a(f"s_cmp_gt_u32 s{S_SPIN}, 200000"); a(f"s_cbranch_scc1 {out}")

GX = PK
GC = RET
def issue_granule_loads(a, vm=None):
    T = PP
    a(f"v_and_b32 v{T}, 31, v{V_LANE}"); a(f"v_lshlrev_b32 v{T+1}, 4, v{T}")
    a(f"s_lshl_b32 s{S_T0}, s{S_B32}, 9"); a(f"s_add_u32 s{S_T0}, s{S_T0}, {WS_XS}")
    a(f"buffer_load_dwordx4 v[{GX}:{GX+3}], v{T+1}, {WS}, s{S_T0} offen sc1")
    a(f"v_lshrrev_b32 v{T+2}, 5, v{V_LANE}"); a(f"v_lshlrev_b32 v{T+2}, 10, v{T+2}"); a(f"v_lshl_add_u32 v{T+2}, v{T}, 3, v{T+2}")
    for b in range(4):
        a(f"s_mul_i32 s{S_T0}, s{S_BMAT+b}, 24"); a(f"s_lshr_b32 s{S_T1}, s{S_BCOL+b}, 7"); a(f"s_add_u32 s{S_T0}, s{S_T0}, s{S_T1}")
        a(f"s_lshl_b32 s{S_T0}, s{S_T0}, 11")
        if b < 3: a(f"s_lshl_b32 s{S_T1}, s{S_E}, 8")
        else: a(f"s_and_b32 s{S_T1}, s{S_C}, 1"); a(f"s_lshl_b32 s{S_T1}, s{S_T1}, 8")
        a(f"s_add_u32 s{S_T0}, s{S_T0}, s{S_T1}"); a(f"s_add_u32 s{S_T0}, s{S_T0}, {WS_CSG}")
        for k in range(2):
            a(f"buffer_load_dwordx2 v[{GC+4*b+2*k}:{GC+4*b+2*k+1}], v{T+2}, {WS}, s{S_T0} offen offset:{512*k} sc1")
    if vm: vm.issue("gr", 9)

def stage_granules(a, vm):
    a(f"s_lshr_b32 s{S_T3}, s{S_WAVE}, 1")
    sel_block(a, S_T3, S_T2, S_T1)
    a(f"s_mul_i32 s{S_T0}, s{S_T2}, 24"); a(f"s_lshr_b32 s{S_T1}, s{S_T1}, 7"); a(f"s_add_u32 s{S_T0}, s{S_T0}, s{S_T1}"); a(f"s_lshl_b32 s{S_T0}, s{S_T0}, 11")
    a(f"s_and_b32 s{S_T1}, s{S_WAVE}, 1"); a(f"s_lshl_b32 s{S_T1}, s{S_T1}, 10"); a(f"s_add_u32 s{S_T0}, s{S_T0}, s{S_T1}"); a(f"s_add_u32 s{S_T0}, s{S_T0}, {WS_CSG}")
    a(f"s_add_u32 m0, s{S_M0W}, {L_GS}")
    a(f"s_lshl_b32 s{S_T1}, s{S_R}, 11"); a(f"s_add_u32 s{S_T1}, s{S_T1}, s{S_M0W}"); a(f"s_add_u32 s{S_T1}, s{S_T1}, {WS_XS}")
    a(f"buffer_load_dwordx4 v{V_L16}, {WS}, s{S_T0} offen sc1 lds")
    a(f"s_add_u32 m0, s{S_M0W}, {L_GS+8192}")
    a(f"s_cmp_ge_u32 s{S_WAVE}, 2"); a(f"s_cselect_b32 s{S_T1}, {OOB}, s{S_T1}")
    a(f"s_cselect_b32 m0, {19*SLOT+4096}, m0") if False else None
    a(f"buffer_load_dwordx4 v{V_L16}, {WS}, s{S_T1} offen sc1 lds")
    vm.issue("gr", 2)

def read_staged_granules(a):
    T = PP
    a(f"v_and_b32 v{T}, 31, v{V_LANE}"); a(f"v_lshlrev_b32 v{T+1}, 4, v{T}")
    a(f"s_lshl_b32 s{S_T0}, s{S_P}, 9"); a(f"s_add_u32 s{S_T0}, s{S_T0}, {L_GS+8192}"); a(f"v_add_u32 v{T+1}, s{S_T0}, v{T+1}")
    a(f"ds_read_b128 v[{GX}:{GX+3}], v{T+1}")
    a(f"v_lshrrev_b32 v{T+2}, 5, v{V_LANE}"); a(f"v_lshlrev_b32 v{T+2}, 10, v{T+2}"); a(f"v_lshl_add_u32 v{T+2}, v{T}, 3, v{T+2}")
    a(f"s_lshl_b32 s{S_T0}, s{S_E}, 8"); a(f"v_add_u32 v{T+3}, s{S_T0}, v{T+2}")
    a(f"s_and_b32 s{S_T0}, s{S_C}, 1"); a(f"s_lshl_b32 s{S_T0}, s{S_T0}, 8"); a(f"v_add_u32 v{T+2}, s{S_T0}, v{T+2}")
    for b in range(4):
        for k in range(2):
            a(f"ds_read_b64 v[{GC+4*b+2*k}:{GC+4*b+2*k+1}], v{T+3 if b < 3 else T+2} offset:{L_GS + b*2048 + k*512}")

def consume_granules(a):
    T = PP
    lp, lo = "L_gr_chk", "L_gr_ok"
    a(f"s_mov_b32 s{S_SPIN}, 0")
    a.label(lp)
    a(f"v_xor_b32 v{T}, s{S_TAG}, v{GX+2}"); a(f"v_xor_b32 v{T+1}, s{S_TAG}, v{GX+3}"); a(f"v_or_b32 v{T}, v{T}, v{T+1}")
    for q in range(8):
        a(f"v_xor_b32 v{T+1}, s{S_TAG}, v{GC+2*q+1}"); a(f"v_or_b32 v{T}, v{T}, v{T+1}")
    a(f"v_cmp_ne_u32 vcc, 0, v{T}")
    a(f"s_cbranch_vccz {lo}")
    spin_check(a, lo)
    issue_granule_loads(a)
    a("s_waitcnt vmcnt(0)")
    a(f"s_branch {lp}")
    a.label(lo)
    a(f"v_mov_b32 v{C_R}, v{GX+1}")
    a(f"v_rcp_f32 v{C_S}, v{GX+1}")
    a(f"v_mul_f32 v{C_B}, {hexf(K1)}, v{C_R}")
    a(f"v_mul_f32 v{T}, v{C_R}, v{C_R}"); a(f"v_mul_f32 v{T}, v{T}, v{C_R}"); a(f"v_mul_f32 v{C_A}, {hexf(K2)}, v{T}")
    a(f"v_mul_f32 v{C_RL}, {hexf(LOG2E)}, v{C_R}")
    a(f"v_cmp_gt_u32 vcc, 32, v{V_LANE}"); a(f"v_cndmask_b32 v{T}, 0, v{GX}, vcc")
    a(f"v_cvt_pk_bf16_f32 v{T+1}, v{T}, v{T}"); a(f"v_lshlrev_b32 v{T+1}, 16, v{T+1}"); a(f"v_sub_f32 v{T+2}, v{T}, v{T+1}")
    a(f"v_cvt_pk_bf16_f32 v{XAUG}, v{T}, v{T+2}"); a(f"v_cvt_pk_bf16_f32 v{XAUG+1}, v{T}, 0")
    for b in range(4):
        a(f"v_add_f32 v{T}, v{GC+4*b}, v{GC+4*b+2}"); a(f"v_mov_b32 v{T+1}, v{T}")
        a(f"v_permlane32_swap_b32 v{T}, v{T+1}"); a(f"v_add_f32 v{T}, v{T}, v{T+1}")
        a(f"v_cvt_pk_bf16_f32 v{CSA+2*b}, v{T}, v{T}"); a(f"v_lshlrev_b32 v{T+1}, 16, v{CSA+2*b}"); a(f"v_sub_f32 v{T+1}, v{T}, v{T+1}")
        a(f"v_cvt_pk_bf16_f32 v{CSA+2*b+1}, v{T+1}, 0")

def aug_mfma(a):
    a(f"v_mfma_f32_32x32x16_bf16 v[{ACC}:{ACC+15}], v[{WAUG}:{WAUG+3}], v[{XAUG}:{XAUG+3}], v[{ACC}:{ACC+15}]")

def pass1(a, vm):
    a(f"s_lshl_b32 s{S_T0}, s{S_E}, 6")
    a(f"v_xor_b32 v{V_WAA}, s{S_T0}, v{V_WA}"); a(f"v_add_u32 v{V_WAA}, {8*SLOT}, v{V_WAA}")
    def compute(st):
        wb = WF + 16*(st & 1)
        for kk in range(4):
            ks = 4*st + kk
            c = "0" if ks == 0 else f"v[{ACC}:{ACC+15}]"
            a(f"v_mfma_f32_32x32x16_bf16 v[{ACC}:{ACC+15}], v[{wb+4*kk}:{wb+4*kk+3}], v[{XF+4*ks}:{XF+4*ks+3}], {c}")
    for st in range(8):
        vm.wait(a, {f"x{st}", f"w{st}"} | ({"gr"} if st == 7 else set()), "lgkmcnt(0)")
        a("s_barrier")
        if st in (0, 4): stamp(a, {0: 2, 4: 3}[st])
        if 'pst' in OPT: stamp(a, 20+st)
        if st > 0:
            d = (2*(st & 3) - 2*((st-1) & 3)) * SLOT
            for kk in range(4):
                if d >= 0: a(f"v_add_u32 v{V_XA+kk}, {d}, v{V_XA+kk}")
                else: a(f"v_subrev_u32 v{V_XA+kk}, {-d}, v{V_XA+kk}")
        wb = WF + 16*(st & 1)
        for kk in range(4):
            ks = 4*st + kk
            a(f"ds_read_b128 v[{XF+4*ks}:{XF+4*ks+3}], v{V_XA+kk}")
            off = (st & 3)*SLOT + kk*2048
            a(f"ds_read_b64_tr_b16 v[{wb+4*kk}:{wb+4*kk+1}], v{V_WAA} offset:{off}")
            a(f"ds_read_b64_tr_b16 v[{wb+4*kk+2}:{wb+4*kk+3}], v{V_WAA} offset:{off+512}")
        if st > 0: compute(st-1)
        if st + 2 < 8:
            sl = st + 2
            x_dma(a, sl, 2*(sl & 3)); vm.issue(f"x{sl}", 2); w_dma(a, sl, 8+(sl & 3)); vm.issue(f"w{sl}")
        if st == 1: finish_ws_srd(a)
        if st == 2: phase0a(a, vm)
        if st == 3: phase0b(a, vm); issue_clears_early(a, vm)
        if st == 5:
            set_wsrd(a, 1)
            for m in (0, 1): w_dma(a, m, B1_A+m)
            vm.issue("b1", 2)
        if st == 6:
            stage_granules(a, vm)
            for m in (2, 3): w_dma(a, m, B1_A+m)
            for m in (4, 5): w_dma(a, m, B1_B+m-4)
            vm.issue("b1", 4)
        if st == 7:
            for m in (6, 7): w_dma(a, m, B1_B+m-4)
            vm.issue("b1", 2)
            read_staged_granules(a)
    a("s_waitcnt lgkmcnt(0)")
    compute(7)
    consume_granules(a)
    a(f"v_mov_b32 v{WAUG}, v{CSA}"); a(f"v_mov_b32 v{WAUG+1}, v{CSA+1}")
    aug_mfma(a)
    a("s_barrier")

def m_phase(a):
    PD = 6
    a(f"s_lshl_b32 s{S_T0}, s{S_ECUR}, 6")
    a(f"v_xor_b32 v{V_WAA}, s{S_T0}, v{V_WA}")
    a(f"v_add_u32 v{V_WAB}, s{S_LB}, v{V_WAA}"); a(f"v_add_u32 v{V_WAA}, s{S_LA}, v{V_WAA}")
    def rd(ks):
        base = V_WAA if ks < 16 else V_WAB
        off = ((ks >> 2) & 3) * SLOT + (ks & 3) * 2048
        b = WF + 4*(ks & 7)
        a(f"ds_read_b64_tr_b16 v[{b}:{b+1}], v{base} offset:{off}")
        a(f"ds_read_b64_tr_b16 v[{b+2}:{b+3}], v{base} offset:{off+512}")
    for ks in range(PD): rd(ks)
    a(f"s_cmp_eq_u32 s{S_CUR}, 2"); a("s_cselect_b64 vcc, -1, 0")
    a(f"v_cndmask_b32 v{WAUG}, v{CSA+2}, v{CSA+4}, vcc"); a(f"v_cndmask_b32 v{WAUG+1}, v{CSA+3}, v{CSA+5}, vcc")
    a(f"s_cmp_eq_u32 s{S_CUR}, 3"); a("s_cselect_b64 vcc, -1, 0")
    a(f"v_cndmask_b32 v{WAUG}, v{WAUG}, v{CSA+6}, vcc"); a(f"v_cndmask_b32 v{WAUG+1}, v{WAUG+1}, v{CSA+7}, vcc")
    for ks in range(32):
        if ks + PD < 32:
            rd(ks+PD); a(f"s_waitcnt lgkmcnt({2*PD})")
        else:
            a(f"s_waitcnt lgkmcnt({2*(31-ks)})")
        b = WF + 4*(ks & 7)
        c = "0" if ks == 0 else f"v[{ACC}:{ACC+15}]"
        a(f"v_mfma_f32_32x32x16_bf16 v[{ACC}:{ACC+15}], v[{b}:{b+3}], v[{XF+4*ks}:{XF+4*ks+3}], {c}")
    aug_mfma(a)

def gelu(a, dst):
    T = TMP
    for g in range(4):
        r = [ACC+4*g+i for i in range(4)]
        t = [T+4*(g&1)+i for i in range(4)]
        u = [T+8+4*(g&1)+i for i in range(4)]
        for i in range(4): a(f"v_mul_f32 v{t[i]}, v{r[i]}, v{r[i]}")
        for i in range(4): a(f"v_fma_f32 v{t[i]}, v{t[i]}, v{C_A}, v{C_B}")
        for i in range(4): a(f"v_mul_f32 v{t[i]}, v{r[i]}, v{t[i]}")
        for i in range(4): a(f"v_exp_f32 v{u[i]}, v{t[i]}")
        for i in range(4): a(f"v_fma_f32 v{u[i]}, v{u[i]}, v{C_S}, v{C_S}")
        for i in range(4): a(f"v_rcp_f32 v{u[i]}, v{u[i]}")
        for i in range(4): a(f"v_mul_f32 v{dst+4*g+i}, v{r[i]}, v{u[i]}")
def phi(a):
    T = TMP
    for g in range(4):
        r = [ACC+4*g+i for i in range(4)]
        t = [T+4*(g&1)+i for i in range(4)]
        for i in range(4): a(f"v_min_f32 v{t[i]}, 0, v{r[i]}")
        for i in range(4): a(f"v_mul_f32 v{t[i]}, v{t[i]}, v{C_RL}")
        for i in range(4): a(f"v_exp_f32 v{t[i]}, v{t[i]}")
        for i in range(4): a(f"v_max_f32 v{r[i]}, 0, v{r[i]}")
        for i in range(4): a(f"v_add_f32 v{t[i]}, s{S_EPS6}, v{t[i]}")
        for i in range(4): a(f"v_fma_f32 v{r[i]}, v{r[i]}, v{C_R}, v{t[i]}")
def pack(a, src, dst):
    for q in range(8): a(f"v_cvt_pk_bf16_f32 v{dst+q}, v{src+2*q}, v{src+2*q+1}")
def transpose(a, P, D, R):
    a(f"v_mfma_f32_32x32x16_bf16 v[{D}:{D+15}], v[{P}:{P+3}], v[{I0}:{I0+3}], 0")
    a(f"v_mfma_f32_32x32x16_bf16 v[{D}:{D+15}], v[{P+4}:{P+7}], v[{I1}:{I1+3}], v[{D}:{D+15}]")
    pack(a, D, R)

def e_phase(a, btyp, bidx):
    T = TMP
    lq, lk, lvv, lg2, ldone, lp1 = ["L_e_" + x for x in ("q", "k", "v", "g2", "done", "g2p1")]
    a(f"s_cmp_eq_u32 s{btyp}, {T_V}"); a(f"s_cbranch_scc1 {lvv}")
    a(f"s_cmp_ge_u32 s{btyp}, {T_Q}"); a(f"s_cbranch_scc1 {lq}")
    a(f"s_cmp_eq_u32 s{btyp}, {T_G2}"); a(f"s_cbranch_scc1 {lg2}")
    a(f"s_mul_i32 s{S_T0}, s{S_B32}, 56"); a(f"s_lshl_b32 s{S_T1}, s{bidx}, 2"); a(f"s_add_u32 s{S_T0}, s{S_T0}, s{S_T1}")
    a(f"s_lshl_b32 s{S_T1}, s{S_ECUR}, 1"); a(f"s_add_u32 s{S_T0}, s{S_T0}, s{S_T1}")
    a(f"s_lshl_b32 s{S_T0}, s{S_T0}, 10"); a(f"s_add_u32 s{S_T0}, s{S_T0}, {WS_Z1}")
    gelu(a, ACC)
    pack(a, ACC, PP)
    for gsel in range(2):
        b = PP + 4*gsel
        a(f"v_permlane16_swap_b32 v{b}, v{b+2}"); a(f"v_permlane16_swap_b32 v{b+1}, v{b+3}")
    a(f"buffer_store_dwordx4 v[{PP}:{PP+3}], v{V_Z1O}, {WS}, s{S_T0} offen sc1")
    a(f"buffer_store_dwordx4 v[{PP+4}:{PP+7}], v{V_Z1O}, {WS}, s{S_T0} offen offset:1024 sc1")
    a(f"s_branch {ldone}")
    a.label(lg2)
    gelu(a, RET)
    a(f"v_add_f32 v{T}, v{RET}, v{RET+1}"); a(f"v_mul_f32 v{T+1}, v{RET}, v{RET}")
    a(f"v_add_f32 v{T+2}, v{RET+2}, v{RET+3}"); a(f"v_mul_f32 v{T+3}, v{RET+1}, v{RET+1}")
    for r in range(2, 16, 2):
        a(f"v_fmac_f32 v{T+1}, v{RET+r}, v{RET+r}"); a(f"v_fmac_f32 v{T+3}, v{RET+r+1}, v{RET+r+1}")
        if r >= 4:
            tgt = T if (r & 2) == 0 else T+2
            a(f"v_add_f32 v{T+4}, v{RET+r}, v{RET+r+1}"); a(f"v_add_f32 v{tgt}, v{tgt}, v{T+4}")
    a(f"v_add_f32 v{T}, v{T}, v{T+2}"); a(f"v_add_f32 v{T+1}, v{T+1}, v{T+3}")
    a(f"v_mov_b32 v{T+2}, v{T}"); a(f"v_mov_b32 v{T+3}, v{T+1}")
    a(f"v_permlane32_swap_b32 v{T}, v{T+2}"); a(f"v_permlane32_swap_b32 v{T+1}, v{T+3}")
    a(f"v_add_f32 v{T}, v{T}, v{T+2}"); a(f"v_add_f32 v{T+1}, v{T+1}, v{T+3}")
    a(f"v_and_b32 v{T+4}, 31, v{V_LANE}"); a(f"v_lshlrev_b32 v{T+4}, 3, v{T+4}")
    a(f"s_lshl_b32 s{S_T0}, s{S_P}, 8"); a(f"s_add_u32 s{S_T0}, s{S_T0}, {L_ST2}"); a(f"v_add_u32 v{T+5}, s{S_T0}, v{T+4}")
    a(f"s_cmp_eq_u32 s{S_E}, 1"); a(f"s_cbranch_scc1 {lp1}")
    a(f"ds_write_b64 v{T+5}, v[{T}:{T+1}]")
    a(f"s_branch {ldone}")
    a.label(lp1)
    a(f"ds_read_b64 v[{T+6}:{T+7}], v{T+5}")
    a(f"s_lshl_b32 s{S_T0}, s{S_R}, 4"); a(f"s_add_u32 s{S_T0}, s{S_T0}, s{S_C}"); a(f"s_lshl_b32 s{S_T0}, s{S_T0}, 10")
    a(f"s_lshl_b32 s{S_T1}, s{S_P}, 8"); a(f"s_add_u32 s{S_T0}, s{S_T0}, s{S_T1}"); a(f"s_add_u32 s{S_T0}, s{S_T0}, {WS_STATS}")
    a("s_waitcnt lgkmcnt(0)")
    a(f"v_add_f32 v{T}, v{T}, v{T+6}"); a(f"v_add_f32 v{T+1}, v{T+1}, v{T+7}")
    a(f"v_cmp_gt_u32 vcc, 32, v{V_LANE}"); a(f"s_and_saveexec_b64 s[{S_SAVE}:{S_SAVE+1}], vcc")
    a(f"buffer_store_dwordx2 v[{T}:{T+1}], v{T+4}, {WS}, s{S_T0} offen sc1")
    a(f"s_mov_b64 exec, s[{S_SAVE}:{S_SAVE+1}]")
    a(f"s_branch {ldone}")
    a.label(lq)
    phi(a)
    pack(a, ACC, PP)
    a(f"s_cmp_eq_u32 s{btyp}, {T_K}"); a(f"s_cbranch_scc1 {lk}")
    a(f"s_lshl_b32 s{S_T0}, s{S_B32}, 5"); a(f"s_lshl_b32 s{S_T1}, s{bidx}, 2"); a(f"s_add_u32 s{S_T0}, s{S_T0}, s{S_T1}")
    a(f"s_lshl_b32 s{S_T1}, s{S_ECUR}, 1"); a(f"s_add_u32 s{S_T0}, s{S_T0}, s{S_T1}")
    a(f"s_lshl_b32 s{S_T0}, s{S_T0}, 10"); a(f"s_add_u32 s{S_T0}, s{S_T0}, {WS_PQ}")
    a(f"buffer_store_dwordx4 v[{PP}:{PP+3}], v{V_L16}, {WS}, s{S_T0} offen sc1")
    a(f"buffer_store_dwordx4 v[{PP+4}:{PP+7}], v{V_L16}, {WS}, s{S_T0} offen offset:1024 sc1")
    a(f"s_branch {ldone}")
    a.label(lk)
    a(f"s_lshl_b32 s{S_T0}, s{S_WAVE}, 8"); a(f"s_add_u32 s{S_T0}, s{S_T0}, {L_ZW}")
    a(f"v_lshlrev_b32 v{T+2}, 2, v{V_LANE}"); a(f"v_add_u32 v{T+2}, s{S_T0}, v{T+2}")
    transpose(a, PP, WF, PK)
    for q in range(8): a(f"v_add_f32 v{WF+q}, v{WF+q}, v{WF+8+q}")
    for q in range(4): a(f"v_add_f32 v{WF+q}, v{WF+q}, v{WF+4+q}")
    a(f"v_add_f32 v{WF}, v{WF}, v{WF+2}"); a(f"v_add_f32 v{WF+1}, v{WF+1}, v{WF+3}"); a(f"v_add_f32 v{T}, v{WF}, v{WF+1}")
    a(f"ds_write_b32 v{T+2}, v{T}")
    a(f"s_branch {ldone}")
    a.label(lvv)
    for r in range(16): a(f"v_mul_f32 v{ACC+r}, v{ACC+r}, v{C_R}")
    pack(a, ACC, PP)
    transpose(a, PP, WF, PP)
    a(f"v_mfma_f32_32x32x16_bf16 v[{WF}:{WF+15}], v[{PK}:{PK+3}], v[{PP}:{PP+3}], 0")
    a(f"v_mfma_f32_32x32x16_bf16 v[{WF}:{WF+15}], v[{PK+4}:{PK+7}], v[{PP+4}:{PP+7}], v[{WF}:{WF+15}]")
    a(f"v_and_b32 v{T}, 16, v{V_LANE}"); a(f"v_cmp_eq_u32 vcc, 0, v{T}")
    a(f"s_lshl_b32 s{S_T0}, s{S_WAVE}, 11"); a(f"s_add_u32 s{S_T0}, s{S_T0}, {L_KVW}")
    a(f"v_lshlrev_b32 v{T+9}, 2, v{V_LANE}"); a(f"v_add_u32 v{T+9}, s{S_T0}, v{T+9}")
    for r in range(8): a(f"v_cndmask_b32 v{T+1+r}, v{WF+8+r}, v{WF+r}, vcc")
    for r in range(8): a(f"ds_write_b32 v{T+9}, v{T+1+r} offset:{256*r}")
    a.label(ldone)

def stage_stats(a):
    T = V_M1
    a(f"v_lshrrev_b32 v{T}, 4, v{V_LANE}"); a(f"v_lshlrev_b32 v{T}, 10, v{T}"); a(f"v_and_b32 v{T+1}, 15, v{V_LANE}"); a(f"v_lshl_add_u32 v{T}, v{T+1}, 4, v{T}")
    a(f"s_lshl_b32 s{S_T0}, s{S_R}, 14"); a(f"s_add_u32 s{S_T0}, s{S_T0}, {WS_STATS}")
    for p in range(4):
        for k in range(4):
            a(f"s_add_u32 s{S_T1}, s{S_T0}, {p*256 + k*4096}")
            a(f"s_mov_b32 m0, {L_SS + p*3584 + k*1024}")
            if k == 3: a("s_mov_b32 exec_hi, 0")
            a(f"buffer_load_dwordx4 v{T}, {WS}, s{S_T1} offen sc1 lds")
            if k == 3: a("s_mov_b64 exec, -1")

def n_phase(a):
    T = TMP
    lskip = "L_n_skip"
    a(f"s_cmp_lg_u32 s{S_BTYP}, {T_G2}"); a(f"s_cbranch_scc1 {lskip}")
    a(f"v_lshrrev_b32 v{T+14}, 5, v{V_LANE}"); a(f"v_mul_u32_u24 v{T+14}, {7*256}, v{T+14}")
    a(f"v_and_b32 v{T+15}, 31, v{V_LANE}"); a(f"v_lshl_add_u32 v{T+14}, v{T+15}, 3, v{T+14}")
    a(f"s_mul_i32 s{S_T0}, s{S_P}, 3584"); a(f"s_add_u32 s{S_T0}, s{S_T0}, {L_SS}"); a(f"v_add_u32 v{T+14}, s{S_T0}, v{T+14}")
    for k in range(7): a(f"ds_read_b64 v[{T+2*k}:{T+2*k+1}], v{T+14} offset:{k*256}")
    a("s_waitcnt lgkmcnt(0)")
    a(f"v_max3_u32 v{T+15}, v{T}, v{T+1}, v{T+2}")
    for k in range(3, 13, 2): a(f"v_max3_u32 v{T+15}, v{T+15}, v{T+k}, v{T+k+1}")
    a(f"v_max_u32 v{T+15}, v{T+15}, v{T+13}")
    a(f"v_cmp_eq_u32 vcc, -1, v{T+15}")
    a("s_cbranch_vccz L_n_ok")
    a(f"v_lshrrev_b32 v{T+14}, 5, v{V_LANE}"); a(f"v_mul_u32_u24 v{T+14}, 7168, v{T+14}")
    a(f"v_and_b32 v{T+15}, 31, v{V_LANE}"); a(f"v_lshl_add_u32 v{T+14}, v{T+15}, 3, v{T+14}")
    a(f"s_lshl_b32 s{S_T0}, s{S_R}, 14"); a(f"s_lshl_b32 s{S_T1}, s{S_P}, 8"); a(f"s_add_u32 s{S_T0}, s{S_T0}, s{S_T1}"); a(f"s_add_u32 s{S_T0}, s{S_T0}, {WS_STATS}")
    a(f"s_add_u32 s{S_T1}, s{S_T0}, 4096")
    lp, lo = "L_n_poll", "L_n_ok"
    a(f"s_mov_b32 s{S_SPIN}, 0")
    a.label(lp)
    for k in range(7):
        so = S_T0 if k < 4 else S_T1
        a(f"buffer_load_dwordx2 v[{T+2*k}:{T+2*k+1}], v{T+14}, {WS}, s{so} offen offset:{(k&3)*1024} sc1")
    a("s_waitcnt vmcnt(0)")
    a(f"v_max3_u32 v{T+15}, v{T}, v{T+1}, v{T+2}")
    for k in range(3, 13, 2): a(f"v_max3_u32 v{T+15}, v{T+15}, v{T+k}, v{T+k+1}")
    a(f"v_max_u32 v{T+15}, v{T+15}, v{T+13}")
    a(f"v_cmp_eq_u32 vcc, -1, v{T+15}")
    spin_check(a, lo)
    a(f"s_cbranch_vccnz {lp}")
    a.label(lo)
    for k in range(1, 7):
        a(f"v_add_f32 v{T}, v{T}, v{T+2*k}"); a(f"v_add_f32 v{T+1}, v{T+1}, v{T+2*k+1}")
    a(f"v_mov_b32 v{T+2}, v{T}"); a(f"v_mov_b32 v{T+3}, v{T+1}")
    a(f"v_permlane32_swap_b32 v{T}, v{T+2}"); a(f"v_permlane32_swap_b32 v{T+1}, v{T+3}")
    a(f"v_add_f32 v{T}, v{T}, v{T+2}"); a(f"v_add_f32 v{T+1}, v{T+1}, v{T+3}")
    a(f"v_mul_f32 v{T}, {hexf(1/896)}, v{T}"); a(f"v_mul_f32 v{T+1}, {hexf(1/896)}, v{T+1}")
    a(f"v_fma_f32 v{T+1}, -v{T}, v{T}, v{T+1}"); a(f"v_max_f32 v{T+1}, 0, v{T+1}"); a(f"v_add_f32 v{T+1}, {hexf(1e-5)}, v{T+1}")
    a(f"v_rsq_f32 v{T+1}, v{T+1}")
    a(f"s_lshl_b32 s{S_T0}, s{S_C}, 2"); a(f"s_lshl_b32 s{S_T1}, s{S_E}, 1"); a(f"s_add_u32 s{S_T0}, s{S_T0}, s{S_T1}")
    a(f"s_lshl_b32 s{S_T0}, s{S_T0}, 6"); a(f"s_add_u32 s{S_T0}, s{S_T0}, s{S_B32}"); a(f"s_lshl_b32 s{S_T0}, s{S_T0}, 10"); a(f"s_add_u32 s{S_T0}, s{S_T0}, {WS_Z2N}")
    a(f"v_mul_f32 v{T}, v{T}, v{T+1}"); a(f"v_sub_f32 v{T}, 0, v{T}")
    for r in range(16): a(f"v_fma_f32 v{RET+r}, v{RET+r}, v{T+1}, v{T}")
    pack(a, RET, PP)
    transpose(a, PP, WF, PP)
    a(f"v_permlane32_swap_b32 v{PP}, v{PP+2}"); a(f"v_permlane32_swap_b32 v{PP+1}, v{PP+3}")
    a(f"v_permlane32_swap_b32 v{PP+4}, v{PP+6}"); a(f"v_permlane32_swap_b32 v{PP+5}, v{PP+7}")
    a(f"buffer_store_dwordx4 v[{PP}:{PP+3}], v{V_Z2O}, {WS}, s{S_T0} offen sc1")
    a(f"buffer_store_dwordx4 v[{PP+4}:{PP+7}], v{V_Z2O}, {WS}, s{S_T0} offen offset:512 sc1")
    a.label(lskip)

def check_flags(a, base, tag):
    lp, lo = f"L_fc{tag}_chk", f"L_fc{tag}_ok"
    a(f"s_mov_b32 s{S_SPIN}, 0")
    a.label(lp)
    a(f"v_xor_b32 v{V_FL}, s{S_TAG}, v{V_FL}"); a(f"v_xor_b32 v{V_FL+1}, s{S_TAG}, v{V_FL+1}"); a(f"v_xor_b32 v{V_FL+2}, s{S_TAG}, v{V_FL+2}"); a(f"v_xor_b32 v{V_FL+3}, s{S_TAG}, v{V_FL+3}")
    a(f"v_or_b32 v{V_FL}, v{V_FL}, v{V_FL+1}"); a(f"v_or3_b32 v{V_FL}, v{V_FL}, v{V_FL+2}, v{V_FL+3}")
    a(f"v_cmp_ne_u32 vcc, 0, v{V_FL}")
    a(f"s_cbranch_vccz {lo}")
    spin_check(a, lo)
    issue_flag_loads(a, base)
    a("s_waitcnt vmcnt(0)")
    a(f"s_branch {lp}")
    a.label(lo)
def issue_flag_loads(a, base):
    a(f"v_lshlrev_b32 v{V_M1}, 7, v{V_LANE}"); a(f"s_mov_b32 s{S_T0}, {base}")
    a(f"buffer_load_dwordx4 v[{V_FL}:{V_FL+3}], v{V_M1}, {WS}, s{S_T0} offen sc1")

def phaseA_main(a):
    T = TMP
    a(f"s_mov_b32 s{S_EPS6}, {hexf(1e-6)}")
    a(f"s_mov_b32 s{S_I}, 1"); a(f"s_mov_b32 s{S_CUR}, 0"); a(f"s_mov_b32 s{S_ECUR}, s{S_E}")
    a(f"s_mov_b32 s{S_CT}, s{S_BTYP}"); a(f"s_mov_b32 s{S_CI}, s{S_BIDX}")
    a(f"s_lshl_b32 s{S_PH}, s{S_E}, 1"); a(f"s_mov_b32 s{S_PINIT}, 0")
    a(f"s_cmp_lt_u32 s{S_C}, 8"); a(f"s_cselect_b32 s{S_NI}, 7, 6")
    a.label("L_A_loop")
    a(f"s_cmp_eq_u32 s{S_I}, 1"); a("s_cbranch_scc1 L_A_h1")
    a(f"s_cmp_eq_u32 s{S_I}, 3"); a("s_cbranch_scc1 L_A_h3")
    a(f"s_cmp_eq_u32 s{S_I}, 4"); a("s_cbranch_scc1 L_A_h4")
    a(f"s_cmp_eq_u32 s{S_I}, 5"); a("s_cbranch_scc0 L_A_hend")
    n_phase(a)
    a(f"s_cmp_eq_u32 s{S_E}, 1"); a("s_cbranch_scc0 L_A_hend")
    a(f"s_cmp_ge_u32 s{S_C}, 8"); a("s_cbranch_scc0 L_A_hend")
    touch_wsp(a, 1)
    touch_cw(a)
    a("s_branch L_A_hend")
    a.label("L_A_h1")
    flag_store(a, WS_FINIT)
    a(f"s_cmp_eq_u32 s{S_E}, 1"); a("s_cbranch_scc0 L_A_hend")
    set_wsrd_p1(a, 2)
    for m in range(4): w_dma2(a, m, B2_A+m)
    for m in range(4, 8): w_dma2(a, m, B2_B+m-4)
    issue_clears_late(a)
    a("s_branch L_A_hend")
    a.label("L_A_h3")
    a(f"s_cmp_eq_u32 s{S_WAVE}, 4"); a("s_cbranch_scc0 L_A_hend")
    issue_flag_loads(a, WS_FINIT)
    a("s_branch L_A_hend")
    a.label("L_A_h4")
    a(f"s_cmp_eq_u32 s{S_WAVE}, 4"); a("s_cbranch_scc0 L_A_h4b")
    a("s_waitcnt vmcnt(0)")
    check_flags(a, WS_FINIT, "i")
    a(f"s_cmp_ge_u32 s{S_C}, 14"); a("s_cbranch_scc1 L_A_h4b")
    stage_stats(a)
    a.label("L_A_h4b")
    a.label("L_A_hend")
    stamp_dyn(a, 32)
    a(f"s_cmp_eq_u32 s{S_PH}, 1"); a("s_cbranch_scc1 L_A_M")
    a(f"s_cmp_eq_u32 s{S_PH}, 2"); a("s_cbranch_scc1 L_A_idle")
    e_phase(a, S_CT, S_CI)
    a(f"s_add_u32 s{S_CUR}, s{S_CUR}, 1")
    a(f"s_cmp_lt_u32 s{S_CUR}, s{S_NB}"); a(f"s_cselect_b32 s{S_PH}, 1, 3")
    a("s_branch L_A_w")
    a.label("L_A_M")
    a(f"s_mov_b32 s{S_LA}, {B1_A*SLOT}"); a(f"s_mov_b32 s{S_LB}, {B1_B*SLOT}")
    a(f"s_and_b32 s{S_T0}, s{S_C}, 1")
    a(f"s_cmp_eq_u32 s{S_CUR}, 2")
    a(f"s_cselect_b32 s{S_LA}, {B2_A*SLOT}, s{S_LA}"); a(f"s_cselect_b32 s{S_LB}, {B2_B*SLOT}, s{S_LB}")
    a(f"s_cselect_b32 s{S_CT}, s{S_BTYP+2}, s{S_BTYP+1}"); a(f"s_cselect_b32 s{S_CI}, s{S_BIDX+2}, s{S_BIDX+1}")
    a(f"s_cmp_eq_u32 s{S_CUR}, 3")
    a(f"s_cselect_b32 s{S_CT}, s{S_BTYP+3}, s{S_CT}"); a(f"s_cselect_b32 s{S_CI}, s{S_BIDX+3}, s{S_CI}")
    a(f"s_cselect_b32 s{S_ECUR}, s{S_T0}, s{S_E}")
    a("s_setprio 1")
    m_phase(a)
    a("s_setprio 0")
    a(f"s_mov_b32 s{S_PH}, 0")
    stamp_dyn(a, 48)
    a(f"s_cmp_eq_u32 s{S_I}, 3"); a("s_cbranch_scc1 L_A_mw3")
    a(f"s_cmp_eq_u32 s{S_I}, 5"); a("s_cbranch_scc0 L_A_bar")
    a(f"s_cmp_lt_u32 s{S_C}, 8"); a("s_cbranch_scc0 L_A_bar")
    a("s_waitcnt vmcnt(2)")
    a("s_branch L_A_bar")
    a.label("L_A_mw3")
    a(f"s_cmp_lt_u32 s{S_C}, 8"); a("s_cbranch_scc1 L_A_mw3x")
    a("s_waitcnt vmcnt(5)"); a("s_branch L_A_bar")
    a.label("L_A_mw3x")
    a("s_waitcnt vmcnt(7)"); a("s_branch L_A_bar")
    a.label("L_A_idle")
    a(f"s_mov_b32 s{S_PH}, 0")
    a.label("L_A_w")
    stamp_dyn(a, 48)
    a(f"s_cmp_eq_u32 s{S_I}, 1"); a("s_cbranch_scc1 L_A_w1")
    a(f"s_cmp_eq_u32 s{S_I}, 4"); a("s_cbranch_scc0 L_A_bar")
    a(f"s_cmp_lt_u32 s{S_C}, 8"); a("s_cbranch_scc1 L_A_w4x")
    a(f"s_cmp_eq_u32 s{S_WAVE}, 4"); a("s_cbranch_scc0 L_A_bar")
    a("s_waitcnt vmcnt(2)"); a("s_branch L_A_bar")
    a.label("L_A_w4x")
    set_wsrd_p1(a, 3)
    for m in range(8): w_dma2(a, m, B1_A+m)
    a("s_waitcnt vmcnt(16)"); a("s_branch L_A_bar")
    a.label("L_A_w1")
    a(f"s_cmp_eq_u32 s{S_E}, 1"); a("s_cbranch_scc1 L_A_w1b")
    a("s_waitcnt vmcnt(1)"); a("s_branch L_A_bar")
    a.label("L_A_w1b")
    a("s_waitcnt vmcnt(21)")
    a(f"s_cmp_lt_u32 s{S_C}, 8"); a("s_cbranch_scc0 L_A_bar")
    touch_wsp(a, 0)
    a.label("L_A_bar")
    a("s_waitcnt lgkmcnt(0)")
    a("s_barrier")
    stamp_dyn(a, 16)
    a(f"s_add_u32 s{S_I}, s{S_I}, 1")
    a(f"s_cmp_gt_u32 s{S_I}, s{S_NI}"); a("s_cbranch_scc1 L_A_done")
    a(f"s_cmp_eq_u32 s{S_PH}, 3"); a("s_cbranch_scc0 L_A_loop")
    a(f"s_cmp_eq_u32 s{S_WAVE}, 7"); a("s_cbranch_scc0 L_A_bar")
    producer_init(a)
    a(f"s_mov_b32 s{S_PINIT}, 1")
    a("s_branch L_A_bar")
    a.label("L_A_done")
    a(f"s_cmp_lt_u32 s{S_C}, 8"); a("s_cbranch_scc0 L_A_fin")
    a(f"v_lshlrev_b32 v{T}, 2, v{V_LANE}")
    a(f"s_lshl_b32 s{S_T0}, s{S_WAVE}, 8"); a(f"s_add_u32 s{S_T0}, s{S_T0}, {L_KVW}"); a(f"v_add_u32 v{T}, s{S_T0}, v{T}")
    for e in range(2):
        for p in range(4): a(f"ds_read_b32 v{T+2+4*e+p}, v{T} offset:{(4*e+p)*2048}")
    a(f"v_lshrrev_b32 v{T+1}, 5, v{V_LANE}"); a(f"v_lshlrev_b32 v{T+1}, 10, v{T+1}"); a(f"v_and_b32 v{T+10}, 31, v{V_LANE}"); a(f"v_lshl_add_u32 v{T+1}, v{T+10}, 2, v{T+1}")
    a(f"v_add_u32 v{T+1}, {L_ZW}, v{T+1}")
    for p in range(4):
        for h in range(2): a(f"ds_read_b32 v{WF+2*p+h}, v{T+1} offset:{p*256+h*128}")
    a(f"v_lshrrev_b32 v{T+11}, 4, v{V_LANE}"); a(f"v_and_b32 v{T+11}, 1, v{T+11}"); a(f"v_mul_u32_u24 v{T+11}, {288*4}, v{T+11}")
    a(f"v_lshrrev_b32 v{T+12}, 5, v{V_LANE}"); a(f"v_lshlrev_b32 v{T+12}, 4, v{T+12}"); a(f"v_and_b32 v{T+13}, 15, v{V_LANE}"); a(f"v_add_u32 v{T+12}, v{T+12}, v{T+13}")
    a(f"v_lshl_add_u32 v{T+11}, v{T+12}, 2, v{T+11}")
    a(f"s_lshl_b32 s{S_T0}, s{S_R}, 5"); a(f"s_lshl_b32 s{S_T1}, s{S_C}, 2"); a(f"s_add_u32 s{S_T0}, s{S_T0}, s{S_T1}"); a(f"s_mul_i32 s{S_T0}, s{S_T0}, {288*4}")
    a(f"s_add_u32 s{S_T2}, s{S_T0}, {WS_KVP}")
    a(f"s_lshl_b32 s{S_T1}, s{S_WAVE}, 7"); a(f"s_add_u32 s{S_T0}, s{S_T2}, s{S_T1}"); a(f"s_add_u32 s{S_T1}, s{S_T0}, {2*288*4}")
    a("s_waitcnt lgkmcnt(0)")
    for e in range(2):
        b = T+2+4*e
        a(f"v_add_f32 v{b}, v{b}, v{b+1}"); a(f"v_add_f32 v{b+2}, v{b+2}, v{b+3}"); a(f"v_add_f32 v{b}, v{b}, v{b+2}")
        a(f"buffer_store_dword v{b}, v{T+11}, {WS}, s{S_T0 if e == 0 else S_T1} offen sc1")
    for q in (0, 2, 4, 6): a(f"v_add_f32 v{WF+q}, v{WF+q}, v{WF+q+1}")
    a(f"v_add_f32 v{WF}, v{WF}, v{WF+2}"); a(f"v_add_f32 v{WF+4}, v{WF+4}, v{WF+6}"); a(f"v_add_f32 v{WF}, v{WF}, v{WF+4}")
    a(f"v_lshrrev_b32 v{T+11}, 4, v{V_LANE}"); a(f"v_mul_u32_u24 v{T+11}, {288*4}, v{T+11}")
    a(f"v_lshrrev_b32 v{T+12}, 2, v{T+13}"); a(f"v_and_b32 v{T+12}, 1, v{T+12}"); a(f"v_lshlrev_b32 v{T+12}, 3, v{T+12}")
    a(f"v_and_b32 v{T+14}, 3, v{T+13}"); a(f"v_add_u32 v{T+12}, v{T+12}, v{T+14}"); a(f"v_lshrrev_b32 v{T+14}, 3, v{T+13}"); a(f"v_lshl_add_u32 v{T+12}, v{T+14}, 2, v{T+12}")
    a(f"v_lshl_add_u32 v{T+11}, v{T+12}, 2, v{T+11}")
    a(f"s_add_u32 s{S_T2}, s{S_T2}, 1024"); a(f"s_cmp_lg_u32 s{S_WAVE}, 0"); a(f"s_cselect_b32 s{S_T2}, {OOB}, s{S_T2}")
    a(f"buffer_store_dword v{WF}, v{T+11}, {WS}, s{S_T2} offen sc1")
    a.label("L_A_fin")


B_R = 8
B_D = 4
ZF = 128
WB = 160
PQF = 224
V_BW0 = 40; V_BW1 = 41; V_SPE = 42; V_SPO = 43; V_BA0 = 44; V_BA1 = 45; V_CD = 46
L_RED = 19 * SLOT
WO1_K = 11
WO1_Q = WO1_K * 2048
S_WOC = 53; S_WOM = 54; S_UOFF = 55; S_XO = 56
S_CB32 = 52; S_TM = 50; S_Q = 51

def srd_from(a, dst, ptr, nbytes):
    a(f"s_mov_b32 s{dst}, s{ptr}"); a(f"s_and_b32 s{dst+1}, s{ptr+1}, 0xffff"); a(f"s_mov_b32 s{dst+2}, {nbytes}"); a(f"s_mov_b32 s{dst+3}, 0x20000")

def flag_store(a, base, wave=0):
    a(f"s_lshr_b32 s{S_T0}, s{S_WG}, 2"); a(f"s_lshl_b32 s{S_T0}, s{S_T0}, 7"); a(f"s_and_b32 s{S_T1}, s{S_WG}, 3"); a(f"s_lshl_b32 s{S_T1}, s{S_T1}, 2")
    a(f"s_add_u32 s{S_T0}, s{S_T0}, s{S_T1}"); a(f"s_add_u32 s{S_T0}, s{S_T0}, {base}")
    a(f"s_cmp_lg_u32 s{S_WAVE}, {wave}"); a(f"s_cselect_b32 s{S_T0}, {OOB}, s{S_T0}")
    a(f"v_mov_b32 v{V_M1}, s{S_TAG}"); a(f"v_mov_b32 v{V_M2}, 0")
    a(f"s_mov_b64 s[{S_SAVE}:{S_SAVE+1}], exec"); a("s_mov_b64 exec, 1")
    a(f"buffer_store_dword v{V_M1}, v{V_M2}, {WS}, s{S_T0} offen sc1")
    a(f"s_mov_b64 exec, s[{S_SAVE}:{S_SAVE+1}]")

V_SP = 200
SRD_Z = 8
def sp_dma_slab(a, slot_static=None):
    if slot_static is None:
        for j in range(8):
            if j == 0: a(f"s_mov_b32 m0, s{S_PSL}")
            else: a(f"s_add_u32 m0, s{S_PSL}, {j*1024}")
            a("s_nop 0") if j == 0 else None
            a(f"buffer_load_dwordx4 v{V_SP+j}, s[{SRD_T}:{SRD_T+3}], s{S_PSIG} offen lds")
        a(f"s_add_u32 s{S_PSL}, s{S_PSL}, {SLOT}"); a(f"s_and_b32 s{S_PSL}, s{S_PSL}, {B_R*SLOT-1}")
    a(f"s_add_u32 s{S_PSIG}, s{S_PSIG}, 128"); a(f"s_and_b32 s{S_PSIG}, s{S_PSIG}, 0xfff")

def producer_init(a):
    T = V_M1; L = V_LANE
    a(f"s_and_b32 s{S_RHO}, s{S_BI}, 7"); a(f"s_lshl_b32 s{S_RHO}, s{S_RHO}, 2"); a(f"s_and_b32 s{S_T0}, s{S_BJ}, 3"); a(f"s_add_u32 s{S_RHO}, s{S_RHO}, s{S_T0}")
    a(f"s_lshl_b32 s{S_T0}, s{S_BI}, 18")
    a(f"s_add_u32 s{SRD_T}, s{P_WSP}, s{S_T0}"); a(f"s_addc_u32 s{SRD_T+1}, s{P_WSP+1}, 0"); a(f"s_and_b32 s{SRD_T+1}, s{SRD_T+1}, 0xffff")
    a(f"s_mov_b32 s{SRD_T+2}, {0 if 'xsp' in OPT else 64*4096}"); a(f"s_mov_b32 s{SRD_T+3}, 0x20000")
    a(f"v_lshrrev_b32 v{T}, 3, v{L}"); a(f"v_and_b32 v{T+1}, 7, v{L}"); a(f"v_lshrrev_b32 v{V_SP+1}, 1, v{T}")
    a(f"v_xor_b32 v{T+1}, v{T+1}, v{V_SP+1}"); a(f"v_lshlrev_b32 v{T+1}, 4, v{T+1}"); a(f"v_lshl_add_u32 v{V_SP}, v{T}, 12, v{T+1}")
    for j in range(1, 8):
        a(f"v_add_u32 v{V_SP+j}, {j*8*4096}, v{V_SP}")
        if j & 1: a(f"v_xor_b32 v{V_SP+j}, 64, v{V_SP+j}")
    a(f"s_lshl_b32 s{S_PSIG}, s{S_RHO}, 7"); a(f"s_mov_b32 s{S_PSL}, 0")
    for k in range(B_R-1): sp_dma_slab(a)

def z_load(a, slotidx):
    b = ZF + 8*slotidx
    a(f"buffer_load_dwordx4 v[{b}:{b+3}], v{V_L16}, s[{SRD_Z}:{SRD_Z+3}], s{S_ZNXT} offen sc1")
    a(f"buffer_load_dwordx4 v[{b+4}:{b+7}], v{V_L16}, s[{SRD_Z}:{SRD_Z+3}], s{S_ZNXT} offen offset:1024 sc1")
    a(f"s_add_u32 s{S_ZNXT}, s{S_ZNXT}, 2048"); a(f"s_and_b32 s{S_ZNXT}, s{S_ZNXT}, 0xffff")

def cd_voffset(a):
    T = V_M1; L = V_LANE
    a(f"v_lshrrev_b32 v{T}, 3, v{L}"); a(f"v_and_b32 v{T+1}, 7, v{L}"); a(f"v_lshrrev_b32 v{V_CD}, 1, v{T}"); a(f"v_and_b32 v{V_CD}, 1, v{V_CD}"); a(f"v_lshlrev_b32 v{V_CD}, 2, v{V_CD}")
    a(f"v_xor_b32 v{T+1}, v{T+1}, v{V_CD}"); a(f"v_lshlrev_b32 v{T+1}, 4, v{T+1}"); a(f"v_lshl_add_u32 v{V_CD}, v{T}, 10, v{T+1}")

def pq_loads(a, k0, n):
    a(f"s_lshl_b32 s{S_T0}, s{S_CB32}, 5"); a(f"s_lshl_b32 s{S_T1}, s{S_Q}, 3"); a(f"s_add_u32 s{S_T0}, s{S_T0}, s{S_T1}"); a(f"s_add_u32 s{S_T0}, s{S_T0}, {k0}")
    a(f"s_lshl_b32 s{S_T0}, s{S_T0}, 10"); a(f"s_add_u32 s{S_T0}, s{S_T0}, {WS_PQ}")
    for k in range(n):
        a(f"buffer_load_dwordx4 v[{PQF+4*(k0+k)}:{PQF+4*(k0+k)+3}], v{V_L16}, {WS}, s{S_T0} offen offset:{k*1024} sc1")

KVF = 128
def kv_loads(a):
    a(f"s_lshl_b32 s{S_LA}, s{S_Q}, 13"); a(f"s_add_u32 s{S_LA}, s{S_LA}, {WS_KVT}"); a(f"s_add_u32 s{S_LB}, s{S_LA}, 4096")
    for k in range(8):
        so = S_LA if k < 4 else S_LB
        a(f"buffer_load_dwordx4 v[{KVF+4*k}:{KVF+4*k+3}], v{V_L16}, {WS}, s{so} offen offset:{(k&3)*1024} sc1")

def phaseB(a):
    T = TMP; L = V_LANE
    stamp(a, 7)
    a(f"s_lshr_b32 s{S_TM}, s{S_WAVE}, 2"); a(f"s_and_b32 s{S_Q}, s{S_WAVE}, 3")
    a(f"s_lshl_b32 s{S_CB32}, s{S_BI}, 1"); a(f"s_add_u32 s{S_CB32}, s{S_CB32}, s{S_TM}")
    a(f"s_mov_b32 s{S_TAU}, 0")
    a(f"s_cmp_eq_u32 s{S_WAVE}, 7"); a("s_cbranch_scc1 L_B_prod")
    a(f"s_and_b32 s{S_RHO}, s{S_BI}, 7"); a(f"s_lshl_b32 s{S_RHO}, s{S_RHO}, 2"); a(f"s_and_b32 s{S_T0}, s{S_BJ}, 3"); a(f"s_add_u32 s{S_RHO}, s{S_RHO}, s{S_T0}")
    a(f"s_mul_i32 s{S_ZB}, s{S_BJ}, 7"); a(f"s_add_u32 s{S_ZB}, s{S_ZB}, s{S_WAVE}"); a(f"s_lshl_b32 s{S_ZB}, s{S_ZB}, 16"); a(f"s_add_u32 s{S_ZB}, s{S_ZB}, {WS_Z2N}")
    a(f"s_add_u32 s{SRD_Z}, s{SRD_WS}, s{S_ZB}"); a(f"s_addc_u32 s{SRD_Z+1}, s{SRD_WS+1}, 0"); a(f"s_mov_b32 s{SRD_Z+2}, {0 if 'xz' in OPT else 65536}"); a(f"s_mov_b32 s{SRD_Z+3}, 0x20000")
    a(f"s_lshl_b32 s{S_ZNXT}, s{S_RHO}, 11")
    for d in range(B_D): z_load(a, d)
    stubs = []
    a(f"v_and_b32 v{T}, 15, v{L}"); a(f"v_lshrrev_b32 v{T+1}, 4, v{L}"); a(f"v_lshrrev_b32 v{T+2}, 1, v{T}")
    a(f"v_xor_b32 v{T+1}, v{T+1}, v{T+2}"); a(f"v_lshlrev_b32 v{T+1}, 4, v{T+1}"); a(f"v_lshl_add_u32 v{V_BW0}, v{T}, 7, v{T+1}"); a(f"v_xor_b32 v{V_BW1}, 64, v{V_BW0}")
    for r in range(16): a(f"v_mov_b32 v{ACC+r}, 0")
    def wreads(st, slot):
        for kk in range(2):
            for tt in range(4):
                w = WB + 32*st + 16*kk + 4*tt
                if 'xds' not in OPT: a(f"ds_read_b128 v[{w}:{w+3}], v{V_BW0 if kk == 0 else V_BW1} offset:{slot*SLOT + tt*2048}")
    def checkz(b):
        a(f"v_max3_u32 v{T}, v{b}, v{b+1}, v{b+2}"); a(f"v_max3_u32 v{T+1}, v{b+3}, v{b+4}, v{b+5}"); a(f"v_max3_u32 v{T}, v{T}, v{b+6}, v{b+7}"); a(f"v_max_u32 v{T}, v{T}, v{T+1}")
        a(f"v_cmp_eq_u32 vcc, -1, v{T}")
    a("s_barrier")
    wreads(0, 0)
    Z1R = 96
    ZB1 = 64
    def extra_loads(k):
        if k == 0:
            a(f"s_mul_i32 s{S_T0}, s{S_BI}, 112"); a(f"s_mul_i32 s{S_T1}, s{S_BJ}, 7"); a(f"s_add_u32 s{S_T0}, s{S_T0}, s{S_T1}"); a(f"s_add_u32 s{S_T0}, s{S_T0}, s{S_WAVE}")
            a(f"s_lshl_b32 s{S_T0}, s{S_T0}, 10"); a(f"s_add_u32 s{S_UOFF}, s{S_T0}, {WS_U}"); a(f"s_add_u32 s{S_T0}, s{S_T0}, {WS_Z1}"); a(f"s_add_u32 s{S_T1}, s{S_T0}, {56*1024}")
            a(f"buffer_load_dwordx4 v[{ZB1}:{ZB1+3}], v{V_L16}, {WS}, s{S_T0} offen sc1"); a(f"buffer_load_dwordx4 v[{ZB1+4}:{ZB1+7}], v{V_L16}, {WS}, s{S_T1} offen sc1")
            srd_from(a, SRD_T, P_BSP, 4096)
            a(f"v_and_b32 v{T+2}, 15, v{L}"); a(f"v_lshlrev_b32 v{T+2}, 1, v{T+2}"); a(f"s_lshl_b32 s{S_T0}, s{S_BI}, 7")
            for tt in range(4): a(f"buffer_load_ushort v{ZB1+8+tt}, v{T+2}, s[{SRD_T}:{SRD_T+3}], s{S_T0} offen offset:{32*tt}")
        elif k == 1: pq_loads(a, 0, 4)
        elif k == 2: pq_loads(a, 4, 4)
    variants = ["L"]
    for var in variants:
        a.label(f"L_B_cl{var}")
        for u in range(8):
            lr, lk = f"L_B_rt{var}{u}", f"L_B_ok{var}{u}"
            b = ZF + 8*(u & 3); st = u & 1
            a("s_waitcnt lgkmcnt(0)")
            a("s_barrier")
            if 'bst' in OPT and u == 0: stamp_reg(a, S_TAU, 16)
            wreads(st ^ 1, (u + 1) & 7)
            if u >= 5:
                lw = a.newlabel("L_B_w"); lw2 = a.newlabel("L_B_w")
                a(f"s_cmp_eq_u32 s{S_TAU}, 24"); a(f"s_cbranch_scc1 {lw}")
                a(f"s_waitcnt vmcnt({2*(B_D-1)})"); a(f"s_branch {lw2}")
                a.label(lw)
                n = 2*(7-u) + sum([6, 4, 4][:u-4])
                a(f"s_waitcnt vmcnt({n})")
                a.label(lw2)
            else:
                a(f"s_waitcnt vmcnt({2*(B_D-1)})")
            checkz(b)
            a(f"s_cbranch_vccnz {lr}")
            a.label(lk)
            for kk in range(2):
                for tt in range(4):
                    w = WB + 32*st + 16*kk + 4*tt
                    if 'xmfma' not in OPT: a(f"v_mfma_f32_16x16x32_bf16 v[{ACC+4*tt}:{ACC+4*tt+3}], v[{b+4*kk}:{b+4*kk+3}], v[{w}:{w+3}], v[{ACC+4*tt}:{ACC+4*tt+3}]")
            if u >= 4:
                lx = a.newlabel("L_B_x"); lx2 = a.newlabel("L_B_x")
                a(f"s_cmp_eq_u32 s{S_TAU}, 24"); a(f"s_cbranch_scc1 {lx}")
                z_load(a, u & 3)
                a.label(lx2)
                stubs.append((lx, lx2, u-4))
            else:
                z_load(a, u & 3)
        a(f"s_add_u32 s{S_TAU}, s{S_TAU}, 8"); a(f"s_cmp_lt_u32 s{S_TAU}, 32"); a(f"s_cbranch_scc1 L_B_cl{var}")
        a("s_branch L_B_epi")
    for lx, lx2, k in stubs:
        a.label(lx); extra_loads(k); a(f"s_branch {lx2}")
    for var in variants:
      for u in range(8):
        lr, lk = f"L_B_rt{var}{u}", f"L_B_ok{var}{u}"
        b = ZF + 8*(u & 3)
        a.label(lr)
        a(f"s_mov_b32 s{S_SPIN}, 0")
        a(f"s_add_u32 s{S_T0}, s{S_TAU}, {u}"); a(f"s_add_u32 s{S_T0}, s{S_T0}, s{S_RHO}"); a(f"s_and_b32 s{S_T0}, s{S_T0}, 31"); a(f"s_lshl_b32 s{S_T0}, s{S_T0}, 11"); a(f"s_add_u32 s{S_T0}, s{S_T0}, s{S_ZB}")
        a.label(lr + "_l")
        a(f"buffer_load_dwordx4 v[{b}:{b+3}], v{V_L16}, {WS}, s{S_T0} offen sc1")
        a(f"buffer_load_dwordx4 v[{b+4}:{b+7}], v{V_L16}, {WS}, s{S_T0} offen offset:1024 sc1")
        a("s_waitcnt vmcnt(0)")
        checkz(b)
        spin_check(a, lk)
        a(f"s_cbranch_vccnz {lr}_l")
        a(f"s_branch {lk}")
    a.label("L_B_epi")
    a("s_waitcnt lgkmcnt(0)")
    stamp(a, 9)
    Z = 64
    kv_loads(a)
    a("s_waitcnt vmcnt(16)")
    for tt in range(4):
        a(f"v_lshlrev_b32 v{Z+8+tt}, 16, v{Z+8+tt}")
    for tt in range(4):
        zr = Z + 4*(tt >> 1) + 2*(tt & 1)
        for i in range(4): a(f"v_add_f32 v{ACC+4*tt+i}, v{ACC+4*tt+i}, v{Z+8+tt}")
        a(f"v_lshlrev_b32 v{T+6}, 16, v{zr}"); a(f"v_and_b32 v{T+7}, 0xffff0000, v{zr}"); a(f"v_lshlrev_b32 v{T+8}, 16, v{zr+1}"); a(f"v_and_b32 v{T+9}, 0xffff0000, v{zr+1}")
        for i in range(4): a(f"v_mul_f32 v{ACC+4*tt+i}, v{ACC+4*tt+i}, v{T+6+i}")
    pack(a, ACC, 76)
    for m in range(2):
        b = 76 + 4*m
        a(f"v_permlane16_swap_b32 v{b}, v{b+2}"); a(f"v_permlane16_swap_b32 v{b+1}, v{b+3}")
    a(f"s_add_u32 s{S_T1}, s{S_UOFF}, {56*1024}")
    a(f"buffer_store_dwordx4 v[76:79], v{V_L16}, {WS}, s{S_UOFF} offen sc1"); a(f"buffer_store_dwordx4 v[80:83], v{V_L16}, {WS}, s{S_T1} offen sc1")
    a("s_branch L_B_end")
    a.label("L_B_prod")
    a(f"s_cmp_eq_u32 s{S_PINIT}, 1"); a("s_cbranch_scc1 L_B_pi")
    producer_init(a)
    a.label("L_B_pi")
    cd_voffset(a)
    srd_from(a, SRD_W, P_WOUT, 896*512*2)
    a(f"s_lshl_b32 s{S_WOC}, s{S_BJ}, 7")
    a(f"s_mov_b32 s{S_WOM}, {8*SLOT}")
    def wout4():
        for q in range(4):
            if q == 0: a(f"s_mov_b32 m0, s{S_WOM}"); a(f"s_mov_b32 s{S_T0}, s{S_WOC}")
            else: a(f"s_add_u32 m0, s{S_WOM}, {q*WO1_Q}"); a(f"s_add_u32 s{S_T0}, s{S_WOC}, {q*224*1024}")
            a(f"buffer_load_dwordx4 v{V_CD}, s[{SRD_W}:{SRD_W+3}], s{S_T0} offen lds")
        a(f"s_add_u32 s{S_WOC}, s{S_WOC}, 8192"); a(f"s_add_u32 s{S_WOM}, s{S_WOM}, 1024")
    def wo_slab():
        for k in range(8):
            if k == 0: a(f"s_mov_b32 m0, s{S_WOM}"); a("s_nop 0")
            else: a(f"s_add_u32 m0, s{S_WOM}, {k*1024}"); a(f"s_add_u32 s{S_WOC}, s{S_WOC}, 8192")
            a(f"buffer_load_dwordx4 v{V_CD}, s[{SRD_W}:{SRD_W+3}], s{S_WOC} offen lds")
        a(f"s_add_u32 s{S_WOC}, s{S_WOC}, 8192"); a(f"s_add_u32 s{S_WOM}, s{S_WOM}, {SLOT}")
    def sync():
        a(f"s_waitcnt vmcnt({8*(B_R-3)})"); a("s_barrier")
    a(f"s_waitcnt vmcnt({8*(B_R-2)})"); a("s_barrier")
    sync(); sp_dma_slab(a)
    sync(); sp_dma_slab(a); flag_store(a, WS_FDONE, 7)
    a(f"s_mov_b32 s{S_TAU}, 2")
    a.label("L_B_pl")
    sync(); sp_dma_slab(a)
    if 'xwo' not in OPT: wout4()
    a(f"s_cmp_eq_u32 s{S_TAU}, 8"); a("s_cbranch_scc1 L_PJ1")
    a(f"s_cmp_eq_u32 s{S_TAU}, 16"); a("s_cbranch_scc1 L_PJ2")
    a.label("L_PJe")
    a(f"s_add_u32 s{S_TAU}, s{S_TAU}, 1"); a(f"s_cmp_lt_u32 s{S_TAU}, 24"); a("s_cbranch_scc1 L_B_pl")
    srd_from(a, SRD_W, P_WO, 512*512*2)
    a(f"s_lshl_b32 s{S_WOC}, s{S_BJ}, 7"); a(f"s_mov_b32 s{S_WOM}, 0")
    sync(); sp_dma_slab(a); wo_slab()
    sync(); wo_slab(); kv_reduce_job(a)
    a(f"s_mov_b32 s{S_TAU}, 26")
    a.label("L_B_pl2")
    sync(); wo_slab()
    a(f"s_add_u32 s{S_TAU}, s{S_TAU}, 1"); a(f"s_cmp_lt_u32 s{S_TAU}, 32"); a("s_cbranch_scc1 L_B_pl2")
    pq_loads(a, 0, 4); pq_loads(a, 4, 4); kv_loads(a)
    a("s_branch L_B_end")
    producer_rare_jobs(a)
    a.label("L_B_end")

RP = 128
def producer_rare_jobs(a):
    T = TMP; L = V_LANE
    a.label("L_PJ1")
    issue_flag_loads(a, WS_FDONE)
    a("s_branch L_PJe")
    a.label("L_PJ2")
    check_flags(a, WS_FDONE, "d")
    a(f"s_cmp_ge_u32 s{S_WG}, 32"); a("s_cbranch_scc1 L_PJe")
    a(f"s_mul_i32 s{S_T0}, s{S_WG}, 1152"); a(f"s_add_u32 s{S_T0}, s{S_T0}, {WS_KVP}")
    for r in range(16):
        a(f"buffer_load_dwordx4 v[{RP+4*r}:{RP+4*r+3}], v{V_L16}, {WS}, s{S_T0} offen sc1")
        if r < 15: a(f"s_add_u32 s{S_T0}, s{S_T0}, {32*1152}")
    a(f"v_lshrrev_b32 v{T}, 2, v{L}"); a(f"v_mul_u32_u24 v{T}, {32*1152}, v{T}"); a(f"v_and_b32 v{T+1}, 3, v{L}"); a(f"v_lshl_add_u32 v{T}, v{T+1}, 4, v{T}")
    a(f"s_mul_i32 s{S_T0}, s{S_WG}, 1152"); a(f"s_add_u32 s{S_T0}, s{S_T0}, {WS_KVP+1024}")
    a(f"buffer_load_dwordx4 v[{RP+64}:{RP+67}], v{T}, {WS}, s{S_T0} offen sc1")
    a("s_branch L_PJe")

def kv_reduce_job(a):
    T = TMP; L = V_LANE
    a(f"s_cmp_ge_u32 s{S_WG}, 32"); a(f"s_cbranch_scc1 L_KVe")
    for r in range(1, 16):
        for d in range(4): a(f"v_add_f32 v{RP+d}, v{RP+d}, v{RP+4*r+d}")
    Zr = RP + 64
    for d in range(4):
        a(f"v_add_f32_dpp v{Zr+d}, v{Zr+d}, v{Zr+d} row_ror:4 row_mask:0xf bank_mask:0xf")
    for d in range(4):
        a(f"v_add_f32_dpp v{Zr+d}, v{Zr+d}, v{Zr+d} row_ror:8 row_mask:0xf bank_mask:0xf")
    for d in range(4):
        a(f"v_mov_b32 v{T+d}, v{Zr+d}")
    for d in range(4):
        a(f"v_permlane16_swap_b32 v{Zr+d}, v{T+d}")
    for d in range(4):
        a(f"v_add_f32 v{Zr+d}, v{Zr+d}, v{T+d}")
    for d in range(4):
        a(f"v_mov_b32 v{T+d}, v{Zr+d}")
    for d in range(4):
        a(f"v_permlane32_swap_b32 v{Zr+d}, v{T+d}")
    for d in range(4):
        a(f"v_add_f32 v{Zr+d}, v{Zr+d}, v{T+d}")
    a(f"v_add_u32 v{T+4}, {L_RED}, v{V_L16}")
    a(f"ds_write_b128 v{T+4}, v[{RP}:{RP+3}]")
    a(f"v_and_b32 v{T+5}, 3, v{L}"); a(f"v_lshlrev_b32 v{T+5}, 4, v{T+5}"); a(f"v_add_u32 v{T+5}, {L_RED+1024}, v{T+5}")
    a(f"ds_write_b128 v{T+5}, v[{Zr}:{Zr+3}]")
    a(f"v_and_b32 v{T+6}, 15, v{L}"); a(f"v_lshrrev_b32 v{T+7}, 5, v{L}"); a(f"v_lshl_add_u32 v{T+6}, v{T+7}, 4, v{T+6}"); a(f"v_lshlrev_b32 v{T+6}, 2, v{T+6}"); a(f"v_add_u32 v{T+6}, {L_RED}, v{T+6}")
    a(f"v_lshlrev_b32 v{T+7}, 5, v{T+7}"); a(f"v_add_u32 v{T+7}, {L_RED+1024}, v{T+7}")
    a("s_waitcnt lgkmcnt(0)")
    for jj in range(8): a(f"ds_read_b32 v{RP+8+jj}, v{T+6} offset:{128*jj}")
    a(f"ds_read_b128 v[{RP+16}:{RP+19}], v{T+7}"); a(f"ds_read_b128 v[{RP+20}:{RP+23}], v{T+7} offset:16")
    a(f"v_and_b32 v{T+8}, 16, v{L}"); a(f"v_cmp_eq_u32 vcc, 0, v{T+8}")
    a("s_waitcnt lgkmcnt(0)")
    for jj in range(8): a(f"v_cndmask_b32 v{RP+8+jj}, v{RP+16+jj}, v{RP+8+jj}, vcc")
    for q in range(4): a(f"v_cvt_pk_bf16_f32 v{RP+24+q}, v{RP+8+2*q}, v{RP+9+2*q}")
    a(f"s_lshl_b32 s{S_T0}, s{S_WG}, 10"); a(f"s_add_u32 s{S_T0}, s{S_T0}, {WS_KVT}")
    a(f"buffer_store_dwordx4 v[{RP+24}:{RP+27}], v{V_L16}, {WS}, s{S_T0} offen sc1")
    a.label("L_KVe")


UF = 160; AS = 48; AT = 80; CO = 216; CW = 16
CDA = 96; CDB = 112
V_CWA = 41; V_CWO = 42; V_CX = 43

def sentinel_check(a, regs, tmp):
    r = list(regs)
    a(f"v_max3_u32 v{tmp}, v{r[0]}, v{r[1]}, v{r[2]}"); r = r[3:]
    while len(r) >= 2:
        a(f"v_max3_u32 v{tmp}, v{tmp}, v{r[0]}, v{r[1]}"); r = r[2:]
    if r: a(f"v_max_u32 v{tmp}, v{tmp}, v{r[0]}")
    a(f"v_cmp_eq_u32 vcc, -1, v{tmp}")

def phaseC(a):
    L = V_LANE
    T = 32
    cd_voffset(a)
    srd_from(a, SRD_T, P_WOUT, 896*512*2)
    a(f"v_lshrrev_b32 v{T}, 5, v{L}"); a(f"v_lshlrev_b32 v{T}, 9, v{T}"); a(f"v_sub_u32 v{V_CWO}, v{V_WA}, v{T}")
    a(f"s_lshl_b32 s{S_T0}, s{S_Q}, 14"); a(f"v_add_u32 v{V_CWO}, s{S_T0}, v{V_CWO}")
    a(f"s_mul_i32 s{S_T0}, s{S_Q}, {WO1_Q}"); a(f"s_add_u32 s{S_T0}, s{S_T0}, {8*SLOT}"); a(f"v_add_u32 v{V_CWA}, s{S_T0}, v{V_WA}")
    a(f"s_mul_i32 s{S_ZB}, s{S_CB32}, 56"); a(f"s_mul_i32 s{S_T0}, s{S_Q}, 14"); a(f"s_add_u32 s{S_ZB}, s{S_ZB}, s{S_T0}"); a(f"s_lshl_b32 s{S_ZB}, s{S_ZB}, 10"); a(f"s_add_u32 s{S_ZB}, s{S_ZB}, {WS_U}")
    a(f"v_xor_b32 v{T+4}, 64, v{V_CWO}")
    a(f"s_cmp_eq_u32 s{S_WAVE}, 7"); a("s_cbranch_scc1 L_C_w7")
    a("s_waitcnt vmcnt(2)"); a("s_branch L_C_w0")
    a.label("L_C_w7")
    a("s_waitcnt vmcnt(0)")
    a.label("L_C_w0")
    a("s_barrier")
    stamp(a, 11)
    a(f"s_mov_b32 s{S_SPIN}, 0")
    a.label("L_C_kvchk")
    sentinel_check(a, range(KVF, KVF+32), T)
    a("s_cbranch_vccz L_C_kvok")
    spin_check(a, "L_C_kvok")
    kv_loads(a)
    a("s_waitcnt vmcnt(0)")
    a("s_branch L_C_kvchk")
    a.label("L_C_kvok")
    def u_loads():
        for k in range(14):
            if k % 4 == 0: a(f"s_add_u32 s{S_T0}, s{S_ZB}, {k*1024}")
            a(f"buffer_load_dwordx4 v[{UF+4*k}:{UF+4*k+3}], v{V_L16}, {WS}, s{S_T0} offen offset:{(k&3)*1024} sc1")
    def att(k):
        cd = CDA if k % 2 == 0 else CDB
        a(f"v_mfma_f32_32x32x16_bf16 v[{cd}:{cd+15}], v[{KVF+4*k}:{KVF+4*k+3}], v[{PQF+4*k}:{PQF+4*k+3}], 0")
    def wo_rd(k):
        for ch in range(2):
            base = V_CWO if ch == 0 else T+4
            w = CW + 8*(k & 1) + 4*ch
            a(f"ds_read_b64_tr_b16 v[{w}:{w+1}], v{base} offset:{k*2048}"); a(f"ds_read_b64_tr_b16 v[{w+2}:{w+3}], v{base} offset:{k*2048+1024}")
    att(0); wo_rd(0)
    for k in range(8):
        cd = CDA if k % 2 == 0 else CDB
        co = CO + 4*(k & 1)
        if k < 7: att(k+1); wo_rd(k+1)
        if k == 5: u_loads()
        a(f"v_add_f32 v{T}, s{S_EPS6}, v{cd+8}"); a(f"v_rcp_f32 v{T}, v{T}")
        for r in range(8): a(f"v_mul_f32 v{cd+r}, v{cd+r}, v{T}")
        for q in range(4): a(f"v_cvt_pk_bf16_f32 v{co+q}, v{cd+2*q}, v{cd+2*q+1}")
        a(f"s_waitcnt lgkmcnt({4 if k < 7 else 0})")
        for ch in range(2):
            w = CW + 8*(k & 1) + 4*ch
            c = "0" if k == 0 else f"v[{AS+16*ch}:{AS+16*ch+15}]"
            a(f"v_mfma_f32_32x32x16_bf16 v[{AS+16*ch}:{AS+16*ch+15}], v[{w}:{w+3}], v[{co}:{co+3}], {c}")
    a("s_barrier")
    a(f"s_lshr_b32 s{S_T2}, s{S_WAVE}, 1"); a(f"s_and_b32 s{S_T3}, s{S_WAVE}, 1")
    a(f"s_mul_i32 s{S_T0}, s{S_T2}, 224"); a(f"s_mul_i32 s{S_T1}, s{S_T3}, 24"); a(f"s_add_u32 s{S_T0}, s{S_T0}, s{S_T1}"); a(f"s_add_u32 s{S_T0}, s{S_T0}, 176")
    a(f"s_lshl_b32 s{S_T0}, s{S_T0}, 10"); a(f"s_lshl_b32 s{S_T1}, s{S_BJ}, 7"); a(f"s_add_u32 s{S_T0}, s{S_T0}, s{S_T1}")
    a(f"s_mul_i32 s{S_T2}, s{S_T2}, 6144"); a(f"s_mul_i32 s{S_T3}, s{S_T3}, 3072"); a(f"s_add_u32 s{S_T2}, s{S_T2}, s{S_T3}")
    for k in range(3):
        a(f"s_add_u32 m0, s{S_T2}, {k*1024}")
        if k: a(f"s_add_u32 s{S_T0}, s{S_T0}, 8192")
        else: a("s_nop 0")
        a(f"buffer_load_dwordx4 v{V_CD}, s[{SRD_T}:{SRD_T+3}], s{S_T0} offen lds")
    SX = 32768
    a(f"s_lshl_b32 s{S_T0}, s{S_TM}, 15"); a(f"s_lshl_b32 s{S_T1}, s{S_Q}, 11"); a(f"s_add_u32 s{S_T0}, s{S_T0}, s{S_T1}"); a(f"s_add_u32 s{S_T0}, s{S_T0}, {SX}")
    a(f"s_mul_i32 s{S_T0}, s{S_TM}, {4*3*1024*2 // 2 * 1}") if False else None
    a(f"v_and_b32 v{T+1}, 31, v{L}"); a(f"v_lshlrev_b32 v{T+1}, 10, v{T+1}"); a(f"v_lshrrev_b32 v{T+2}, 5, v{L}"); a(f"v_lshl_add_u32 v{V_CX}, v{T+2}, 3, v{T+1}")
    a(f"s_lshl_b32 s{S_T0}, s{S_CB32}, 15"); a(f"s_lshl_b32 s{S_T1}, s{S_BJ}, 7"); a(f"s_add_u32 s{S_T0}, s{S_T0}, s{S_T1}"); a(f"s_lshl_b32 s{S_T1}, s{S_Q}, 5"); a(f"s_add_u32 s{S_XO}, s{S_T0}, s{S_T1}")
    XR = 220
    a(f"buffer_load_dwordx2 v[{XR}:{XR+1}], v{V_CX}, s[{SRD_X}:{SRD_X+3}], s{S_XO} offen"); a(f"buffer_load_dwordx2 v[{XR+2}:{XR+3}], v{V_CX}, s[{SRD_X}:{SRD_X+3}], s{S_XO} offen offset:16")
    a("s_waitcnt vmcnt(5)")
    a(f"s_mov_b32 s{S_SPIN}, 0")
    a.label("L_C_uchk")
    sentinel_check(a, range(UF, UF+56), T)
    a("s_cbranch_vccz L_C_uok")
    spin_check(a, "L_C_uok")
    u_loads()
    a("s_waitcnt vmcnt(0)")
    a("s_branch L_C_uchk")
    a.label("L_C_uok")
    stamp(a, 12)
    a(f"v_xor_b32 v{T+4}, 64, v{V_CWA}")
    a(f"s_mul_i32 s{S_T0}, s{S_Q}, 6144"); a(f"v_add_u32 v{T+5}, s{S_T0}, v{V_WA}"); a(f"v_xor_b32 v{T+6}, 64, v{T+5}")
    TB = [16, 24, 128, 136]
    def tstep(k):
        if k < WO1_K: b0, b1, off = V_CWA, T+4, k*2048
        else: b0, b1, off = T+5, T+6, (k-WO1_K)*2048
        for ch in range(2):
            base = b0 if ch == 0 else b1
            w = TB[k & 3] + 4*ch
            a(f"ds_read_b64_tr_b16 v[{w}:{w+1}], v{base} offset:{off}"); a(f"ds_read_b64_tr_b16 v[{w+2}:{w+3}], v{base} offset:{off+512}")
    def tmfma(k):
        for ch in range(2):
            w = TB[k & 3] + 4*ch
            c = "0" if k == 0 else f"v[{AT+16*ch}:{AT+16*ch+15}]"
            a(f"v_mfma_f32_32x32x16_bf16 v[{AT+16*ch}:{AT+16*ch+15}], v[{w}:{w+3}], v[{UF+4*k}:{UF+4*k+3}], {c}")
    for k in range(2): tstep(k)
    for k in range(14):
        nx = k + 2
        if nx == WO1_K:
            a("s_waitcnt vmcnt(0)"); a("s_barrier")
        if nx < 14:
            tstep(nx); a("s_waitcnt lgkmcnt(8)")
        else:
            a(f"s_waitcnt lgkmcnt({4*(13-k)})")
        tmfma(k)
    a("s_barrier")
    stamp(a, 13)
    a(f"s_lshl_b32 s{S_T0}, s{S_TM}, 16"); a(f"s_lshl_b32 s{S_T1}, s{S_Q}, 12"); a(f"s_add_u32 s{S_T0}, s{S_T0}, s{S_T1}")
    a(f"v_add_u32 v{T}, s{S_T0}, v{V_L16}")
    FS, FT = 112, 120
    for q in range(4):
        lq, ln = f"L_C_q{q}", f"L_C_q{q+1}"
        a.label(lq)
        if q < 3: a(f"s_cmp_eq_u32 s{S_Q}, {q}"); a(f"s_cbranch_scc0 {ln}")
        for qd in range(4):
            ch, hf = qd >> 1, qd & 1
            srcS = AS + 16*ch + 8*hf; srcT = AT + 16*ch + 8*hf
            if qd == q: continue
            a(f"ds_write_b128 v{T}, v[{srcS}:{srcS+3}] offset:{qd*16384}"); a(f"ds_write_b128 v{T}, v[{srcS+4}:{srcS+7}] offset:{qd*16384+1024}")
            a(f"ds_write_b128 v{T}, v[{srcT}:{srcT+3}] offset:{qd*16384+2048}"); a(f"ds_write_b128 v{T}, v[{srcT+4}:{srcT+7}] offset:{qd*16384+3072}")
        ch, hf = q >> 1, q & 1
        for r in range(8): a(f"v_mov_b32 v{FS+r}, v{AS+16*ch+8*hf+r}"); a(f"v_mov_b32 v{FT+r}, v{AT+16*ch+8*hf+r}")
        a(f"s_lshl_b32 s{S_T0}, s{S_TM}, 16"); a(f"s_add_u32 s{S_T0}, s{S_T0}, {q*16384}"); a(f"v_add_u32 v{T+1}, s{S_T0}, v{V_L16}")
        a("s_waitcnt lgkmcnt(0)")
        a("s_barrier")
        RB = 128
        n = 0
        for qs in range(4):
            if qs == q: continue
            for c4 in range(4): a(f"ds_read_b128 v[{RB+16*n+4*c4}:{RB+16*n+4*c4+3}], v{T+1} offset:{qs*4096+c4*1024}")
            n += 1
        for n in range(3):
            a(f"s_waitcnt lgkmcnt({4*(2-n)})")
            for r in range(8): a(f"v_add_f32 v{FS+r}, v{FS+r}, v{RB+16*n+r}"); a(f"v_add_f32 v{FT+r}, v{FT+r}, v{RB+16*n+8+r}")
        if q < 3: a("s_branch L_C_fin")
    a.label("L_C_fin")
    E_ = 176; RB = 128
    for r in range(8): a(f"v_mul_f32 v{E_+r}, {hexf(-LOG2E)}, v{FT+r}")
    for r in range(8): a(f"v_exp_f32 v{E_+r}, v{E_+r}")
    for r in range(8): a(f"v_add_f32 v{E_+r}, 1.0, v{E_+r}")
    for r in range(8): a(f"v_rcp_f32 v{E_+r}, v{E_+r}")
    for r in range(8): a(f"v_mul_f32 v{E_+r}, v{FT+r}, v{E_+r}")
    for q in range(4):
        a(f"v_lshlrev_b32 v{RB+2*q}, 16, v{XR+q}"); a(f"v_and_b32 v{RB+2*q+1}, 0xffff0000, v{XR+q}")
    for r in range(8): a(f"v_fma_f32 v{RB+r}, v{FS+r}, v{E_+r}, v{RB+r}")
    for q in range(4): a(f"v_cvt_pk_bf16_f32 v{XR+q}, v{RB+2*q}, v{RB+2*q+1}")
    srd_from(a, SRD_W, P_OUT, 2048*512*2)
    a(f"buffer_store_dwordx2 v[{XR}:{XR+1}], v{V_CX}, s[{SRD_W}:{SRD_W+3}], s{S_XO} offen"); a(f"buffer_store_dwordx2 v[{XR+2}:{XR+3}], v{V_CX}, s[{SRD_W}:{SRD_W+3}], s{S_XO} offen offset:16")
    a(f"s_mov_b32 s{S_T1}, {WS_EPOCH}"); a(f"s_or_b32 s{S_T0}, s{S_WG}, s{S_WAVE}"); a(f"s_cmp_eq_u32 s{S_T0}, 0"); a(f"s_cselect_b32 s{S_T0}, s{S_T1}, {OOB}")
    a(f"v_mov_b32 v{V_M1}, s{S_TAG}"); a(f"v_mov_b32 v{V_M2}, 0")
    a("s_mov_b64 exec, 1")
    a(f"buffer_store_dword v{V_M1}, v{V_M2}, {WS}, s{S_T0} offen sc1")
    a("s_mov_b64 exec, -1")

def kernel_footer(K, nv=256, ns=102):
    return f""".p2align 6
.amdhsa_kernel {K}
  .amdhsa_next_free_vgpr {nv}
  .amdhsa_next_free_sgpr {ns}
  .amdhsa_accum_offset {nv}
  .amdhsa_group_segment_fixed_size 0
  .amdhsa_kernarg_size 88
  .amdhsa_user_sgpr_count 2
  .amdhsa_user_sgpr_kernarg_segment_ptr 1
  .amdhsa_system_sgpr_workgroup_id_x 1
.end_amdhsa_kernel
"""

def emit_phaseA(a):
    vm = VM()
    setup_first(a, vm)
    if 'pst' in OPT: stamp(a, 18)
    setup_lane_consts(a)
    if 'pst' in OPT: stamp(a, 19)
    issue_initial(a, vm)
    stamp(a, 1)
    pass1(a, vm)
    stamp(a, 5)
    phaseA_main(a)

def build(dbg=False, upto="A"):
    global DBG
    DBG = dbg
    a = Asm()
    if dbg: a(f"v_mov_b32 v{V_ST}, 0")
    stamp(a, 0)
    emit_phaseA(a)
    stamp(a, 6)
    if upto >= "B":
        phaseB(a)
        stamp(a, 10)
    if upto >= "C":
        phaseC(a)
        stamp(a, 14)
    a("s_waitcnt vmcnt(0)")
    stamp(a, 8)
    dump_stamps(a)
    a("s_waitcnt vmcnt(0)")
    a.label("L_end")
    a("s_endpgm")
    a.label("L_codeend")
    a.fix_hazards()
    hdr = f"; @launch grid=(256,1,1) block=(512,1,1) lds={LDS_BYTES}\n.amdgcn_target \"amdgcn-amd-amdhsa--gfx950\"\n.text\n.globl {KNAME}\n.p2align 8\n.type {KNAME},@function\n{KNAME}:\n"
    return hdr + a.text() + '.section .rodata,"a"\n' + kernel_footer(KNAME)

if __name__ == "__main__":
    out = sys.argv[1] if len(sys.argv) > 1 else "k3.s"
    open(out, "w").write(build(dbg=('nodbg' not in OPT), upto=os.environ.get("UPTO", "C")))
    print("written", out)
```

```python
import sys, math, os, struct
sys.path.insert(0, "dev")
from asmlib import Asm

KNAME = "recurrent_scan__linear_attn_block__mixer_gmlp__prompt_kernel"
OPT = set(os.environ.get('GOPT', '').split(','))

WS_FINIT = 0x000000
WS_FDONE = 0x002000
WS_EPOCH = 0x004000
WS_XS    = 0x008000
WS_CSG   = 0x010000
WS_STATS = 0x030000
WS_KVP   = 0x080000
WS_KVT   = 0x120000
WS_Z2N   = 0x200000
WS_Z1    = 0x600000
WS_PQ    = 0xA00000
WS_U     = 0xC00000
WS_DBG   = 0x1000000
WS_BYTES = 268435456
OOB = 0x7F000000

LDS_BYTES = 163840
SLOT = 8192
L_CSU = 12 * SLOT
L_CSB = 14 * SLOT
L_ST2 = 8 * SLOT + 2048
L_ZW  = 8 * SLOT
L_SS  = 8 * SLOT + 2048
L_GS  = 0
L_KVW = 10 * SLOT
B1_A, B1_B, B2_A, B2_B = 12, 16, 0, 4

LOG2E = 1.4426950408889634
K1 = -2.0 * LOG2E * math.sqrt(2.0 / math.pi)
K2 = K1 * 0.044715
def f2u(x): return struct.unpack("<I", struct.pack("<f", x))[0]
def hexf(x): return hex(f2u(x))

S_WG = 2
SRD_X = 4; SRD_W = 8; SRD_WS = 12; SRD_T = 16
P_WQKV = 20; P_WIN = 22
S_WAVE = 24; S_P = 25; S_E = 26; S_R = 27; S_C = 28; S_TAG = 29; S_ONES = 30
S_T0 = 31; S_T1 = 32; S_T2 = 33; S_T3 = 34
S_XB = 35; S_I = 36; S_NB = 37; S_B32 = 38; S_ECUR = 39
S_BCOL = 40; S_BMAT = 44; S_BTYP = 48; S_BIDX = 52
S_LA = 56; S_LB = 57; S_CUR = 58; S_WSTR = 59
S_SAVE = 60
S_SZQ = 62; S_SZI = 63
S_ROTK = 64
S_W64 = 72; S_WBASE = 73; S_M0W = 74; S_M0X = 75; S_PH = 76; S_NI = 77
S_BI = 78; S_BJ = 79
S_SPIN = 80; S_EPS6 = 81; S_CT = 82; S_CI = 83
S_CSO = 98; S_XTK = 99; S_PINIT = 100; S_W8 = 98; S_M0P = 99; S_B3F = 101; S_NDONE = 87
S_TS = 84
P_WSP = 88; P_BSP = 90; P_WO = 92; P_WOUT = 94; P_OUT = 96
S_RHO = 40; S_TAU = 41; S_ZB = 42; S_ZCUR = 43; S_ZNXT = 44; S_SLOT = 45; S_SPB = 46; S_PSL = 47; S_PSIG = 48; S_ZLEFT = 49

V_TID = 0; V_L16 = 1; V_Z1O = 2; V_Z2O = 3; V_WA = 4; V_WDQ = 5; V_WDI = 6; V_WD = 7
V_LANE = 8; V_ST = 9
C_A = 10; C_B = 11; C_S = 12; C_R = 13; C_RL = 14; V_M0 = 15
XAUG = 16; WAUG = 20; I0 = 24; I1 = 28
V_WAA = 32; V_WAB = 33; V_FL = 34
V_M1 = 38; V_M2 = 39
V_XA = 36
V_XDE = 44; V_XDO = 45
CSA = 40
RET = 48; PK = 64; PP = 72; WF = 80; TMP = 96; ACC = 112; XF = 128
T_G1, T_G2, T_Q, T_K, T_V = 0, 1, 2, 3, 4

DBG = False
def stamp(a, k):
    if not DBG: return
    a(f"s_memtime s[{S_TS}:{S_TS+1}]"); a("s_waitcnt lgkmcnt(0)")
    a(f"v_writelane_b32 v{V_ST}, s{S_TS}, {k}")
def stamp_dyn(a, base):
    if not (DBG and 'fine' in OPT): return
    a(f"s_memtime s[{S_TS}:{S_TS+1}]"); a(f"s_add_u32 s{S_TS+2}, s{S_I}, {base}"); a("s_waitcnt lgkmcnt(0)")
    a(f"s_mov_b32 m0, s{S_TS+2}")
    a(f"v_writelane_b32 v{V_ST}, s{S_TS}, m0")
def stamp_reg(a, sreg, add):
    if not DBG: return
    a(f"s_memtime s[{S_TS}:{S_TS+1}]"); a(f"s_add_u32 s{S_TS+2}, s{sreg}, {add}"); a("s_waitcnt lgkmcnt(0)")
    a(f"s_mov_b32 m0, s{S_TS+2}")
    a(f"v_writelane_b32 v{V_ST}, s{S_TS}, m0")
def dump_stamps(a):
    if not DBG: return
    a(f"s_lshl_b32 s{S_T0}, s{S_WG}, 3"); a(f"s_add_u32 s{S_T0}, s{S_T0}, s{S_WAVE}"); a(f"s_lshl_b32 s{S_T0}, s{S_T0}, 8"); a(f"s_add_u32 s{S_T0}, s{S_T0}, {WS_DBG}")
    a(f"v_lshlrev_b32 v{TMP}, 2, v{V_LANE}")
    a(f"buffer_store_dword v{V_ST}, v{TMP}, s[{SRD_WS}:{SRD_WS+3}], s{S_T0} offen")

class VM:
    def __init__(self): self.ops = []
    def issue(self, tag, n=1): self.ops += [tag]*n
    def count_after(self, tags):
        last = max(i for i, t in enumerate(self.ops) if t in tags)
        return len(self.ops) - 1 - last
    def wait(self, a, tags, extra=""):
        n = self.count_after(tags)
        assert n <= 63
        a(f"s_waitcnt vmcnt({n}) {extra}".strip())

WS = f"s[{SRD_WS}:{SRD_WS+3}]"


V_TCH = 34
def setup_first(a, vm):
    a(f"s_cmp_ge_u32 s{S_WG}, 256")
    a("s_cbranch_scc1 L_end")
    a(f"s_load_dwordx2 s[{SRD_X}:{SRD_X+1}], s[0:1], 0")
    a(f"s_load_dwordx2 s[{P_WQKV}:{P_WQKV+1}], s[0:1], 8")
    a(f"s_load_dwordx2 s[{P_WIN}:{P_WIN+1}], s[0:1], 32")
    a(f"s_load_dwordx2 s[{SRD_WS}:{SRD_WS+1}], s[0:1], 80")
    a(f"s_load_dwordx2 s[{P_WSP}:{P_WSP+1}], s[0:1], 40")
    a(f"s_load_dwordx2 s[{P_BSP}:{P_BSP+1}], s[0:1], 48")
    a(f"s_load_dwordx2 s[{P_WO}:{P_WO+1}], s[0:1], 16")
    a(f"s_load_dwordx2 s[{P_WOUT}:{P_WOUT+1}], s[0:1], 56")
    a(f"s_load_dwordx2 s[{P_OUT}:{P_OUT+1}], s[0:1], 64")
    L = V_LANE; T = TMP
    a(f"v_lshrrev_b32 v{T}, 6, v0")
    a(f"v_and_b32 v{L}, 63, v0")
    a(f"v_readfirstlane_b32 s{S_WAVE}, v{T}")
    a(f"s_lshr_b32 s{S_T1}, s{S_WG}, 3")
    a(f"s_lshr_b32 s{S_T0}, s{S_WG}, 1"); a(f"s_and_b32 s{S_T0}, s{S_T0}, 3")
    a(f"s_and_b32 s{S_T3}, s{S_WG}, 1")
    a(f"s_lshl_b32 s{S_R}, s{S_T3}, 3"); a(f"s_and_b32 s{S_T2}, s{S_T1}, 7"); a(f"s_add_u32 s{S_R}, s{S_R}, s{S_T2}")
    a(f"s_lshr_b32 s{S_T2}, s{S_T1}, 3"); a(f"s_lshl_b32 s{S_C}, s{S_T2}, 2"); a(f"s_add_u32 s{S_C}, s{S_C}, s{S_T0}")
    a(f"s_lshl_b32 s{S_BI}, s{S_T0}, 3"); a(f"s_and_b32 s{S_T2}, s{S_T1}, 7"); a(f"s_add_u32 s{S_BI}, s{S_BI}, s{S_T2}")
    a(f"s_lshl_b32 s{S_BJ}, s{S_T3}, 2"); a(f"s_lshr_b32 s{S_T2}, s{S_T1}, 3"); a(f"s_add_u32 s{S_BJ}, s{S_BJ}, s{S_T2}")
    a(f"s_and_b32 s{S_P}, s{S_WAVE}, 3"); a(f"s_lshr_b32 s{S_E}, s{S_WAVE}, 2")
    a(f"s_mov_b32 s{S_SZQ}, {512*1536*2}"); a(f"s_mov_b32 s{S_SZI}, {512*1792*2}")
    lx, ly, ld = "L_tX", "L_tY", "L_tdone"
    def blk(b, col, mat, typ, idx):
        a(col) if isinstance(col, str) else [a(x) for x in col]
        a(f"s_mov_b32 s{S_BMAT+b}, {mat}"); a(f"s_mov_b32 s{S_BTYP+b}, {typ}"); a(f"s_mov_b32 s{S_BIDX+b}, s{idx}")
    a(f"s_cmp_lt_u32 s{S_C}, 8"); a(f"s_cbranch_scc1 {lx}")
    a(f"s_sub_u32 s{S_T0}, s{S_C}, 8"); a(f"s_lshr_b32 s{S_T0}, s{S_T0}, 1"); a(f"s_add_u32 s{S_T0}, s{S_T0}, 10")
    blk(3, f"s_lshl_b32 s{S_BCOL+3}, s{S_T0}, 7", 1, T_G1, S_T0)
    a(f"s_sub_u32 s{S_NB}, 4, s{S_E}")
    a(f"s_cmp_lt_u32 s{S_C}, 14"); a(f"s_cbranch_scc1 {ly}")
    a(f"s_sub_u32 s{S_T0}, s{S_C}, 14"); a(f"s_lshl_b32 s{S_T0}, s{S_T0}, 1"); a(f"s_add_u32 s{S_T0}, s{S_T0}, 6")
    blk(0, f"s_lshl_b32 s{S_BCOL}, s{S_T0}, 7", 1, T_G1, S_T0)
    a(f"s_add_u32 s{S_T0}, s{S_T0}, 1")
    blk(2, f"s_lshl_b32 s{S_BCOL+2}, s{S_T0}, 7", 1, T_G1, S_T0)
    a(f"s_sub_u32 s{S_T0}, s{S_C}, 8")
    blk(1, f"s_lshl_b32 s{S_BCOL+1}, s{S_T0}, 7", 0, T_Q, S_T0)
    a(f"s_branch {ld}")
    a.label(ly)
    blk(0, [f"s_lshl_b32 s{S_BCOL}, s{S_C}, 7", f"s_add_u32 s{S_BCOL}, s{S_BCOL}, 1792"], 1, T_G2, S_C)
    a(f"s_sub_u32 s{S_T0}, s{S_C}, 8")
    blk(1, f"s_lshl_b32 s{S_BCOL+1}, s{S_T0}, 7", 0, T_Q, S_T0)
    blk(2, f"s_lshl_b32 s{S_BCOL+2}, s{S_T0}, 7", 1, T_G1, S_T0)
    a(f"s_branch {ld}")
    a.label(lx)
    blk(0, [f"s_lshl_b32 s{S_BCOL}, s{S_C}, 7", f"s_add_u32 s{S_BCOL}, s{S_BCOL}, 1792"], 1, T_G2, S_C)
    a(f"s_lshl_b32 s{S_T0}, s{S_C}, 7")
    blk(1, f"s_add_u32 s{S_BCOL+1}, s{S_T0}, 1024", 0, T_K, S_C)
    blk(2, f"s_add_u32 s{S_BCOL+2}, s{S_T0}, 2048", 0, T_V, S_C)
    blk(3, f"s_mov_b32 s{S_BCOL+3}, s{S_BCOL+2}", 0, T_V, S_C)
    a(f"s_mov_b32 s{S_NB}, 3")
    a.label(ld)
    a("s_waitcnt lgkmcnt(0)")
    if 'pst' in OPT: stamp(a, 16)
    a(f"s_load_dword s{S_TAG}, s[{SRD_WS}:{SRD_WS+1}], {WS_EPOCH}")
    a(f"s_and_b32 s{SRD_X+1}, s{SRD_X+1}, 0xffff"); a(f"s_mov_b32 s{SRD_X+2}, {2048*512*2}"); a(f"s_mov_b32 s{SRD_X+3}, 0x20000")
    a(f"s_cmp_ge_u32 s{S_WAVE}, 4"); a("s_cbranch_scc1 L_tch_x")
    sel_block(a, S_P, S_T2, S_T1)
    set_wsrd_regs(a, S_T2, S_T1, novgpr=True)
    a(f"v_mul_lo_u32 v{T}, v{L}, s{S_WSTR}")
    a(f"s_and_b32 s{S_T0}, s{S_R}, 7"); a(f"s_mul_i32 s{S_T0}, s{S_T0}, s{S_W64}"); a(f"s_add_u32 s{S_T0}, s{S_T0}, s{S_T1}")
    a(f"buffer_load_dword v{V_TCH}, v{T}, s[{SRD_W}:{SRD_W+3}], s{S_T0} offen")
    a("s_branch L_tch_c")
    a.label("L_tch_x")
    a(f"v_lshrrev_b32 v{T}, 3, v{L}"); a(f"v_and_b32 v{T+1}, 7, v{L}"); a(f"v_lshlrev_b32 v{T+1}, 7, v{T+1}"); a(f"v_lshl_add_u32 v{T}, v{T}, 10, v{T+1}")
    a(f"s_lshr_b32 s{S_T0}, s{S_C}, 2"); a(f"s_lshl_b32 s{S_T0}, s{S_T0}, 5"); a(f"s_lshl_b32 s{S_T1}, s{S_P}, 3"); a(f"s_add_u32 s{S_T0}, s{S_T0}, s{S_T1}")
    a(f"s_lshl_b32 s{S_T1}, s{S_R}, 7"); a(f"s_add_u32 s{S_T0}, s{S_T0}, s{S_T1}"); a(f"s_lshl_b32 s{S_T0}, s{S_T0}, 10")
    a(f"buffer_load_dword v{V_TCH}, v{T}, s[{SRD_X}:{SRD_X+3}], s{S_T0} offen")
    a.label("L_tch_c")
    a(f"s_getpc_b64 s[{SRD_T}:{SRD_T+1}]")
    a.label("L_pc0")
    a(f"s_and_b32 s{SRD_T+1}, s{SRD_T+1}, 0xffff"); a(f"s_mov_b32 s{SRD_T+2}, L_codeend-L_pc0"); a(f"s_mov_b32 s{SRD_T+3}, 0x20000")
    a(f"v_lshlrev_b32 v{T}, 7, v{L}"); a(f"s_lshr_b32 s{S_T0}, s{S_WG}, 3"); a(f"s_lshl_b32 s{S_T0}, s{S_T0}, 10")
    a(f"s_cmp_lg_u32 s{S_WAVE}, 0"); a(f"s_cselect_b32 s{S_T0}, {OOB}, s{S_T0}")
    a(f"s_mov_b64 exec, 0xff")
    a(f"buffer_load_dword v{V_TCH+1}, v{T}, s[{SRD_T}:{SRD_T+3}], s{S_T0} offen")
    a(f"s_mov_b64 exec, -1")
    vm.issue("tch", 2)
    if 'pst' in OPT: stamp(a, 17)
    a(f"v_lshlrev_b32 v{V_L16}, 4, v{L}")
    a(f"v_lshrrev_b32 v{T}, 3, v{L}"); a(f"v_and_b32 v{T+1}, 7, v{L}"); a(f"v_lshrrev_b32 v{T+2}, 1, v{T}")
    a(f"v_xor_b32 v{T+3}, v{T+1}, v{T+2}"); a(f"v_lshlrev_b32 v{T+3}, 4, v{T+3}")
    a(f"v_lshl_add_u32 v{V_XDE}, v{T}, 10, v{T+3}"); a(f"v_xor_b32 v{V_XDO}, 64, v{V_XDE}")
    a(f"v_and_b32 v{T+2}, 1, v{T+2}"); a(f"v_lshlrev_b32 v{T+2}, 2, v{T+2}"); a(f"v_xor_b32 v{T+2}, v{T+1}, v{T+2}"); a(f"v_lshlrev_b32 v{T+2}, 4, v{T+2}")
    a(f"v_mul_u32_u24 v{T+3}, 3072, v{T}"); a(f"v_add_u32 v{V_WDQ}, v{T+3}, v{T+2}")
    a(f"v_mul_u32_u24 v{T+3}, 3584, v{T}"); a(f"v_add_u32 v{V_WDI}, v{T+3}, v{T+2}")
    a(f"s_mov_b32 s{S_ONES}, 0x3f803f80")
    a(f"s_lshl_b32 s{S_B32}, s{S_R}, 2"); a(f"s_add_u32 s{S_B32}, s{S_B32}, s{S_P}")
    a(f"s_lshl_b32 s{S_XB}, s{S_R}, 17"); a(f"s_lshl_b32 s{S_T0}, s{S_WAVE}, 14"); a(f"s_add_u32 s{S_XB}, s{S_XB}, s{S_T0}")
    a(f"s_lshr_b32 s{S_T0}, s{S_C}, 2"); a(f"s_lshl_b32 s{S_T0}, s{S_T0}, 1"); a(f"s_add_u32 s{S_T0}, s{S_T0}, s{S_R}")
    for m in range(8):
        a(f"s_add_u32 s{S_ROTK+m}, s{S_T0}, {m}"); a(f"s_and_b32 s{S_ROTK+m}, s{S_ROTK+m}, 7")
    a(f"s_lshl_b32 s{S_M0W}, s{S_WAVE}, 10"); a(f"s_lshl_b32 s{S_M0X}, s{S_WAVE}, 11")

def sel_block(a, sidx, dmat, dcol):
    a(f"s_mov_b32 s{dmat}, s{S_BMAT}"); a(f"s_mov_b32 s{dcol}, s{S_BCOL}")
    for b in (1, 2, 3):
        a(f"s_cmp_eq_u32 s{sidx}, {b}"); a(f"s_cselect_b32 s{dmat}, s{S_BMAT+b}, s{dmat}"); a(f"s_cselect_b32 s{dcol}, s{S_BCOL+b}, s{dcol}")

def finish_ws_srd(a):
    a("s_waitcnt lgkmcnt(0)")
    a(f"s_and_b32 s{SRD_WS+1}, s{SRD_WS+1}, 0xffff"); a(f"s_mov_b32 s{SRD_WS+2}, {WS_BYTES}"); a(f"s_mov_b32 s{SRD_WS+3}, 0x20000")
    a(f"s_add_u32 s{S_TAG}, s{S_TAG}, 1")

def set_wsrd_regs(a, mat, col, novgpr=False):
    a(f"s_cmp_eq_u32 s{mat}, 0")
    a(f"s_cselect_b32 s{SRD_W}, s{P_WQKV}, s{P_WIN}")
    a(f"s_cselect_b32 s{SRD_W+1}, s{P_WQKV+1}, s{P_WIN+1}")
    a(f"s_cselect_b32 s{SRD_W+2}, s{S_SZQ}, s{S_SZI}")
    a(f"s_mov_b32 s{SRD_W+3}, 0x20000")
    if not novgpr:
        a("s_cselect_b64 vcc, -1, 0")
        a(f"v_cndmask_b32 v{V_WD}, v{V_WDI}, v{V_WDQ}, vcc")
    a(f"s_lshl_b32 s{S_WSTR}, s{mat}, 9"); a(f"s_add_u32 s{S_WSTR}, s{S_WSTR}, 3072")
    a(f"s_lshl_b32 s{S_W64}, s{S_WSTR}, 6")
    a(f"s_mul_i32 s{S_WBASE}, s{S_WSTR}, s{S_WAVE}"); a(f"s_lshl_b32 s{S_WBASE}, s{S_WBASE}, 3")
    a(f"s_add_u32 s{S_WBASE}, s{S_WBASE}, s{col}")
def set_wsrd(a, b): set_wsrd_regs(a, S_BMAT+b, S_BCOL+b)

def w_dma(a, slab, slot):
    a(f"s_mul_i32 s{S_T0}, s{S_ROTK+slab}, s{S_W64}")
    a(f"s_add_u32 m0, s{S_M0W}, {slot*SLOT}")
    a(f"s_add_u32 s{S_T0}, s{S_T0}, s{S_WBASE}")
    a(f"buffer_load_dwordx4 v{V_WD}, s[{SRD_W}:{SRD_W+3}], s{S_T0} offen lds")
def set_wsrd_p1(a, b):
    set_wsrd(a, b)
    a(f"s_lshl_b32 s{S_T0}, s{S_P}, 4"); a(f"s_mul_i32 s{S_WBASE}, s{S_WSTR}, s{S_T0}"); a(f"s_add_u32 s{S_WBASE}, s{S_WBASE}, s{S_BCOL+b}")
    a(f"s_lshl_b32 s{S_W8}, s{S_WSTR}, 3"); a(f"s_lshl_b32 s{S_M0P}, s{S_P}, 11")
def w_dma2(a, slab, slot):
    a(f"s_mul_i32 s{S_T0}, s{S_ROTK+slab}, s{S_W64}")
    a(f"s_add_u32 m0, s{S_M0P}, {slot*SLOT}")
    a(f"s_add_u32 s{S_T0}, s{S_T0}, s{S_WBASE}")
    a(f"buffer_load_dwordx4 v{V_WD}, s[{SRD_W}:{SRD_W+3}], s{S_T0} offen lds")
    a(f"s_add_u32 m0, s{S_M0P}, {slot*SLOT+1024}")
    a(f"s_add_u32 s{S_T0}, s{S_T0}, s{S_W8}")
    a(f"buffer_load_dwordx4 v{V_WD}, s[{SRD_W}:{SRD_W+3}], s{S_T0} offen lds")
def x_dma(a, slab, slot):
    a(f"s_lshl_b32 s{S_T0}, s{S_ROTK+slab}, 7")
    a(f"s_add_u32 m0, s{S_M0X}, {slot*SLOT}")
    a(f"s_add_u32 s{S_T0}, s{S_T0}, s{S_XB}")
    a(f"buffer_load_dwordx4 v{V_XDE}, s[{SRD_X}:{SRD_X+3}], s{S_T0} offen lds")
    a(f"s_add_u32 m0, s{S_M0X}, {slot*SLOT+1024}")
    a(f"s_add_u32 s{S_T0}, s{S_T0}, 8192")
    a(f"buffer_load_dwordx4 v{V_XDO}, s[{SRD_X}:{SRD_X+3}], s{S_T0} offen lds")

def issue_initial(a, vm):
    T = TMP
    set_wsrd(a, 0)
    x_dma(a, 0, 0); vm.issue("x0", 2); w_dma(a, 0, 8); vm.issue("w0")
    a(f"s_lshr_b32 s{S_T3}, s{S_R}, 2")
    sel_block(a, S_T3, S_T2, S_T1)
    set_wsrd_regs(a, S_T2, S_T1)
    a(f"s_mul_i32 s{S_CSO}, s{S_T2}, 24"); a(f"s_lshr_b32 s{S_T0}, s{S_T1}, 7"); a(f"s_add_u32 s{S_CSO}, s{S_CSO}, s{S_T0}"); a(f"s_lshl_b32 s{S_CSO}, s{S_CSO}, 2")
    a(f"s_and_b32 s{S_T0}, s{S_R}, 3"); a(f"s_add_u32 s{S_CSO}, s{S_CSO}, s{S_T0}"); a(f"s_lshl_b32 s{S_CSO}, s{S_CSO}, 9"); a(f"s_add_u32 s{S_CSO}, s{S_CSO}, {WS_CSG}")
    a(f"s_lshl_b32 s{S_T0}, s{S_T0}, 7"); a(f"s_lshl_b32 s{S_T2}, s{S_WAVE}, 4"); a(f"s_add_u32 s{S_T0}, s{S_T0}, s{S_T2}")
    a(f"s_mul_i32 s{S_T0}, s{S_T0}, s{S_WSTR}"); a(f"s_add_u32 s{S_T0}, s{S_T0}, s{S_T1}")
    a(f"s_add_u32 m0, s{S_M0X}, {L_CSU}")
    a(f"s_lshl_b32 s{S_T2}, s{S_WSTR}, 3")
    a(f"buffer_load_dwordx4 v{V_WD}, s[{SRD_W}:{SRD_W+3}], s{S_T0} offen lds"); vm.issue("cu")
    a(f"s_add_u32 m0, s{S_M0X}, {L_CSU+1024}")
    a(f"s_add_u32 s{S_T0}, s{S_T0}, s{S_T2}")
    a(f"buffer_load_dwordx4 v{V_WD}, s[{SRD_W}:{SRD_W+3}], s{S_T0} offen lds"); vm.issue("cu")
    a(f"s_lshl_b32 s{S_XTK}, s{S_R}, 7"); a(f"s_lshl_b32 s{S_T0}, s{S_C}, 3"); a(f"s_add_u32 s{S_XTK}, s{S_XTK}, s{S_T0}"); a(f"s_add_u32 s{S_XTK}, s{S_XTK}, s{S_WAVE}")
    a(f"s_lshl_b32 s{S_T0}, s{S_XTK}, 10")
    a(f"buffer_load_dwordx4 v[{PP}:{PP+3}], v{V_L16}, s[{SRD_X}:{SRD_X+3}], s{S_T0} offen"); vm.issue("xr")
    set_wsrd(a, 0)
    for sl in (1, 2):
        x_dma(a, sl, 2*sl); vm.issue(f"x{sl}", 2); w_dma(a, sl, 8+sl); vm.issue(f"w{sl}")

def phase0_unused(a, vm):
    vm.wait(a, {"cu", "xr"})
    a("s_barrier")
    for sl in (1, 2):
        x_dma(a, sl, 2*sl); vm.issue(f"x{sl}", 2); w_dma(a, sl, 8+sl); vm.issue(f"w{sl}")
    finish_ws_srd(a)
    phase0a(a, vm)
    a("s_waitcnt lgkmcnt(0)")
    a("s_barrier")
    phase0b(a, vm)

def issue_clears_early(a, vm):
    T = PP
    for d in range(4): a(f"v_mov_b32 v{T+d}, -1")
    a(f"s_lshl_b32 s{S_T0}, s{S_C}, 2"); a(f"s_lshr_b32 s{S_T1}, s{S_WAVE}, 1"); a(f"s_add_u32 s{S_T0}, s{S_T0}, s{S_T1}"); a(f"s_lshl_b32 s{S_T0}, s{S_T0}, 6")
    a(f"s_lshl_b32 s{S_T1}, s{S_R}, 2"); a(f"s_add_u32 s{S_T0}, s{S_T0}, s{S_T1}"); a(f"s_and_b32 s{S_T1}, s{S_WAVE}, 1"); a(f"s_lshl_b32 s{S_T1}, s{S_T1}, 1")
    a(f"s_add_u32 s{S_T0}, s{S_T0}, s{S_T1}"); a(f"s_lshl_b32 s{S_T0}, s{S_T0}, 10"); a(f"s_add_u32 s{S_T0}, s{S_T0}, {WS_Z2N}")
    a(f"s_cmp_ge_u32 s{S_C}, 14"); a(f"s_cselect_b32 s{S_T0}, {OOB}, s{S_T0}")
    a(f"buffer_store_dwordx4 v[{T}:{T+3}], v{V_L16}, {WS}, s{S_T0} offen sc1"); a(f"buffer_store_dwordx4 v[{T}:{T+3}], v{V_L16}, {WS}, s{S_T0} offen offset:1024 sc1")
    a(f"s_lshl_b32 s{S_T0}, s{S_R}, 4"); a(f"s_add_u32 s{S_T0}, s{S_T0}, s{S_C}"); a(f"s_lshl_b32 s{S_T0}, s{S_T0}, 10"); a(f"s_add_u32 s{S_T0}, s{S_T0}, {WS_STATS}")
    a(f"s_cmp_lg_u32 s{S_WAVE}, 0"); a(f"s_cselect_b32 s{S_T0}, {OOB}, s{S_T0}")
    a(f"buffer_store_dwordx4 v[{T}:{T+3}], v{V_L16}, {WS}, s{S_T0} offen sc1")
    vm.issue("clr", 3)

def issue_clears_late(a):
    T = PP
    for d in range(4): a(f"v_mov_b32 v{T+d}, -1")
    a(f"s_mul_i32 s{S_T0}, s{S_BI}, 112"); a(f"s_mul_i32 s{S_T1}, s{S_BJ}, 7"); a(f"s_add_u32 s{S_T0}, s{S_T0}, s{S_T1}"); a(f"s_add_u32 s{S_T0}, s{S_T0}, s{S_WAVE}")
    a(f"s_lshl_b32 s{S_T0}, s{S_T0}, 10"); a(f"s_add_u32 s{S_T0}, s{S_T0}, {WS_U}"); a(f"s_add_u32 s{S_T1}, s{S_T0}, {56*1024}")
    a(f"buffer_store_dwordx4 v[{T}:{T+3}], v{V_L16}, {WS}, s{S_T0} offen sc1"); a(f"buffer_store_dwordx4 v[{T}:{T+3}], v{V_L16}, {WS}, s{S_T1} offen sc1")
    a(f"s_cmp_lt_u32 s{S_WG}, 32"); a("s_cbranch_scc0 L_clr_d")
    a(f"s_cmp_eq_u32 s{S_WAVE}, 0"); a("s_cbranch_scc0 L_clr_d")
    a(f"s_lshl_b32 s{S_T2}, s{S_WG}, 10"); a(f"s_add_u32 s{S_T2}, s{S_T2}, {WS_KVT}")
    a(f"buffer_store_dwordx4 v[{T}:{T+3}], v{V_L16}, {WS}, s{S_T2} offen sc1")
    a.label("L_clr_d")

def touch_wsp(a, half):
    T = V_M1
    a(f"s_and_b32 s{S_T0}, s{S_BI}, 7"); a(f"s_lshl_b32 s{S_T0}, s{S_T0}, 2"); a(f"s_add_u32 s{S_T0}, s{S_T0}, {16*half}")
    a(f"v_and_b32 v{T}, 15, v{V_LANE}"); a(f"v_add_u32 v{T}, s{S_T0}, v{T}"); a(f"v_and_b32 v{T}, 31, v{T}"); a(f"v_lshlrev_b32 v{T}, 7, v{T}")
    a(f"v_lshrrev_b32 v{T+1}, 4, v{V_LANE}"); a(f"v_lshl_add_u32 v{T}, v{T+1}, 12, v{T}")
    srd_from(a, SRD_T, P_WSP, 2048*2048*2)
    a(f"s_lshl_b32 s{S_T0}, s{S_BI}, 6"); a(f"s_and_b32 s{S_T1}, s{S_BJ}, 1"); a(f"s_lshl_b32 s{S_T1}, s{S_T1}, 5"); a(f"s_add_u32 s{S_T0}, s{S_T0}, s{S_T1}")
    a(f"s_lshl_b32 s{S_T1}, s{S_P}, 3"); a(f"s_add_u32 s{S_T0}, s{S_T0}, s{S_T1}"); a(f"s_lshl_b32 s{S_T0}, s{S_T0}, 12")
    a(f"buffer_load_dword v{V_TCH}, v{T}, s[{SRD_T}:{SRD_T+3}], s{S_T0} offen")
    a(f"s_add_u32 s{S_T0}, s{S_T0}, {4*4096}")
    a(f"buffer_load_dword v{V_TCH+1}, v{T}, s[{SRD_T}:{SRD_T+3}], s{S_T0} offen")

def touch_cw(a):
    T = V_M1
    a(f"v_lshlrev_b32 v{T}, 10, v{V_LANE}")
    a(f"s_cmp_eq_u32 s{S_P}, 3"); a("s_cbranch_scc1 L_tcw_d")
    a(f"s_cmp_eq_u32 s{S_P}, 2"); a("s_cbranch_scc1 L_tcw_o")
    srd_from(a, SRD_T, P_WOUT, 896*512*2)
    a(f"s_and_b32 s{S_T0}, s{S_BI}, 7"); a(f"s_mul_i32 s{S_T0}, s{S_T0}, {112*1024}")
    a(f"s_lshl_b32 s{S_T1}, s{S_P}, 1"); a(f"s_add_u32 s{S_T1}, s{S_BJ}, s{S_T1}"); a(f"s_lshl_b32 s{S_T1}, s{S_T1}, 7"); a(f"s_add_u32 s{S_T0}, s{S_T0}, s{S_T1}")
    a(f"buffer_load_dword v{V_TCH+2}, v{T}, s[{SRD_T}:{SRD_T+3}], s{S_T0} offen"); a(f"s_add_u32 s{S_T0}, s{S_T0}, {56*1024}")
    a(f"buffer_load_dword v{V_TCH+3}, v{T}, s[{SRD_T}:{SRD_T+3}], s{S_T0} offen")
    a("s_branch L_tcw_d")
    a.label("L_tcw_o")
    srd_from(a, SRD_T, P_WO, 512*512*2)
    a(f"s_and_b32 s{S_T0}, s{S_BI}, 7"); a(f"s_lshl_b32 s{S_T0}, s{S_T0}, 16"); a(f"s_lshl_b32 s{S_T1}, s{S_BJ}, 7"); a(f"s_add_u32 s{S_T0}, s{S_T0}, s{S_T1}")
    a(f"buffer_load_dword v{V_TCH+2}, v{T}, s[{SRD_T}:{SRD_T+3}], s{S_T0} offen"); a(f"s_add_u32 s{S_T0}, s{S_T0}, 256")
    a(f"buffer_load_dword v{V_TCH+3}, v{T}, s[{SRD_T}:{SRD_T+3}], s{S_T0} offen")
    a.label("L_tcw_d")

def setup_lane_consts(a):
    L = V_LANE; T = TMP + 4
    a(f"v_and_b32 v{T}, 31, v{L}"); a(f"v_lshrrev_b32 v{T+1}, 5, v{L}")
    a(f"v_lshrrev_b32 v{T+2}, 1, v{T}"); a(f"v_and_b32 v{T+2}, 7, v{T+2}")
    a(f"v_xor_b32 v{T+3}, v{T+1}, v{T+2}"); a(f"v_lshlrev_b32 v{T+3}, 4, v{T+3}")
    a(f"s_lshl_b32 s{S_T0}, s{S_P}, 12")
    a(f"v_lshl_add_u32 v{T+4}, v{T}, 7, v{T+3}"); a(f"v_add_u32 v{V_XA}, s{S_T0}, v{T+4}")
    for kk in range(1, 4): a(f"v_xor_b32 v{V_XA+kk}, {kk<<5}, v{V_XA}")
    a(f"v_lshrrev_b32 v{T}, 2, v{L}"); a(f"v_and_b32 v{T}, 3, v{T}")
    a(f"v_lshrrev_b32 v{T+1}, 5, v{L}"); a(f"v_lshl_add_u32 v{T+2}, v{T+1}, 3, v{T}")
    a(f"v_lshrrev_b32 v{T+3}, 4, v{L}"); a(f"v_and_b32 v{T+3}, 1, v{T+3}")
    a(f"v_lshrrev_b32 v{T+4}, 1, v{L}"); a(f"v_and_b32 v{T+4}, 1, v{T+4}"); a(f"v_lshl_add_u32 v{T+4}, v{T+3}, 1, v{T+4}")
    a(f"v_lshrrev_b32 v{T+5}, 1, v{T}"); a(f"v_lshlrev_b32 v{T+5}, 2, v{T+5}"); a(f"v_xor_b32 v{T+4}, v{T+4}, v{T+5}")
    a(f"v_lshlrev_b32 v{T+4}, 4, v{T+4}"); a(f"v_lshl_add_u32 v{T+4}, v{T+2}, 7, v{T+4}")
    a(f"v_and_b32 v{T+5}, 1, v{L}"); a(f"v_lshl_add_u32 v{V_WA}, v{T+5}, 3, v{T+4}")
    a(f"v_lshrrev_b32 v{T}, 4, v{L}"); a(f"v_and_b32 v{T+1}, 1, v{T}"); a(f"v_lshlrev_b32 v{T+1}, 1, v{T+1}")
    a(f"v_lshrrev_b32 v{T}, 1, v{T}"); a(f"v_or_b32 v{T}, v{T}, v{T+1}")
    a(f"v_and_b32 v{T+1}, 15, v{L}"); a(f"v_lshl_add_u32 v{T}, v{T}, 4, v{T+1}"); a(f"v_lshlrev_b32 v{V_Z1O}, 4, v{T}")
    a(f"v_lshrrev_b32 v{T}, 4, v{L}"); a(f"v_and_b32 v{T}, 1, v{T}"); a(f"v_lshlrev_b32 v{T}, 16, v{T}")
    a(f"v_lshrrev_b32 v{T+1}, 5, v{L}"); a(f"v_and_b32 v{T+2}, 15, v{L}"); a(f"v_lshl_add_u32 v{T+1}, v{T+1}, 4, v{T+2}")
    a(f"v_lshl_add_u32 v{V_Z2O}, v{T+1}, 4, v{T}")
    a(f"v_and_b32 v{T}, 15, v{L}"); a(f"v_lshrrev_b32 v{T+1}, 2, v{T}"); a(f"v_and_b32 v{T+1}, 1, v{T+1}"); a(f"v_lshrrev_b32 v{T+2}, 5, v{L}")
    a(f"v_and_b32 v{T+3}, 3, v{T}"); a(f"v_lshrrev_b32 v{T+4}, 3, v{T}"); a(f"v_lshl_add_u32 v{T+3}, v{T+4}, 2, v{T+3}")
    a(f"v_and_b32 v{T+4}, 1, v{T+3}"); a(f"v_lshlrev_b32 v{T+4}, 4, v{T+4}")
    a(f"v_mov_b32 v{T+5}, 0x3f80"); a(f"v_lshlrev_b32 v{T+5}, v{T+4}, v{T+5}"); a(f"v_lshrrev_b32 v{T+3}, 1, v{T+3}")
    a(f"v_cmp_eq_u32 vcc, v{T+1}, v{T+2}"); a(f"v_cndmask_b32 v{T+5}, 0, v{T+5}, vcc")
    a(f"v_lshrrev_b32 v{T+6}, 4, v{L}"); a(f"v_and_b32 v{T+6}, 1, v{T+6}"); a(f"v_lshl_add_u32 v{T+6}, v{T+6}, 2, v{T+3}")
    for d in range(8):
        a(f"v_cmp_eq_u32 vcc, {d}, v{T+6}"); a(f"v_cndmask_b32 v{I0+d}, 0, v{T+5}, vcc")
    a(f"v_mov_b32 v{XAUG+2}, 0"); a(f"v_mov_b32 v{XAUG+3}, 0"); a(f"v_mov_b32 v{WAUG+2}, 0"); a(f"v_mov_b32 v{WAUG+3}, 0")

def dpp_sum64(a, regs):
    for sh in (1, 2, 4, 8):
        for r in regs: a(f"v_add_f32_dpp v{r}, v{r}, v{r} row_shr:{sh} row_mask:0xf bank_mask:0xf bound_ctrl:0")
    for r in regs: a(f"v_add_f32_dpp v{r}, v{r}, v{r} row_bcast:15 row_mask:0xa bank_mask:0xf")
    for r in regs: a(f"v_add_f32_dpp v{r}, v{r}, v{r} row_bcast:31 row_mask:0xc bank_mask:0xf")

def phase0a(a, vm):
    T = PK
    F = RET
    S, Q = T, T+1
    a(f"s_lshl_b32 s{S_T0}, s{S_E}, 6"); a(f"v_xor_b32 v{T+2}, s{S_T0}, v{V_WA}")
    a(f"s_lshl_b32 s{S_T0}, s{S_P}, 12"); a(f"s_add_u32 s{S_T0}, s{S_T0}, {L_CSU}"); a(f"v_add_u32 v{T+2}, s{S_T0}, v{T+2}")
    for k in range(2):
        a(f"ds_read_b64_tr_b16 v[{F+4*k}:{F+4*k+1}], v{T+2} offset:{2048*k}")
        a(f"ds_read_b64_tr_b16 v[{F+4*k+2}:{F+4*k+3}], v{T+2} offset:{2048*k+512}")
    a(f"v_mov_b32 v{S}, 0"); a(f"v_mov_b32 v{Q}, 0")
    for d in range(4):
        a(f"v_dot2c_f32_bf16 v{S}, s{S_ONES}, v{PP+d}"); a(f"v_dot2c_f32_bf16 v{Q}, v{PP+d}, v{PP+d}")
    dpp_sum64(a, [S, Q])
    a(f"v_mul_f32 v{S}, {hexf(1/512)}, v{S}"); a(f"v_mul_f32 v{Q}, {hexf(1/512)}, v{Q}")
    a(f"v_fma_f32 v{Q}, -v{S}, v{S}, v{Q}"); a(f"v_max_f32 v{Q}, 0, v{Q}"); a(f"v_add_f32 v{Q}, {hexf(1e-5)}, v{Q}")
    a(f"v_rsq_f32 v{T+5}, v{Q}")
    a(f"v_sub_f32 v{T+4}, 0, v{S}")
    a(f"v_mov_b32 v{T+6}, s{S_TAG}"); a(f"v_mov_b32 v{T+7}, s{S_TAG}")
    a(f"s_lshl_b32 s{S_T0}, s{S_XTK}, 4"); a(f"s_add_u32 s{S_T0}, s{S_T0}, {WS_XS}")
    a(f"v_mov_b32 v{T+3}, 0")
    a(f"v_cmp_eq_u32 vcc, 63, v{V_LANE}"); a(f"s_and_saveexec_b64 s[{S_SAVE}:{S_SAVE+1}], vcc")
    a(f"buffer_store_dwordx4 v[{T+4}:{T+7}], v{T+3}, {WS}, s{S_T0} offen sc1"); vm.issue("xs")
    a(f"s_mov_b64 exec, s[{S_SAVE}:{S_SAVE+1}]")
    a(f"v_mov_b32 v{S}, 0"); a(f"v_mov_b32 v{Q}, 0")
    a("s_waitcnt lgkmcnt(0)")
    for d in range(8): a(f"v_dot2c_f32_bf16 v{S+(d&1)}, s{S_ONES}, v{F+d}")
    a(f"v_add_f32 v{S}, v{S}, v{Q}")
    a(f"v_and_b32 v{T+2}, 31, v{V_LANE}"); a(f"v_lshlrev_b32 v{T+2}, 5, v{T+2}")
    a(f"s_lshl_b32 s{S_T0}, s{S_E}, 10"); a(f"s_add_u32 s{S_T0}, s{S_T0}, {L_CSB}"); a(f"v_add_u32 v{V_M0}, s{S_T0}, v{T+2}")
    a(f"v_lshrrev_b32 v{T+3}, 5, v{V_LANE}"); a(f"v_lshl_add_u32 v{T+2}, v{T+3}, 2, v{V_M0}")
    a(f"s_lshl_b32 s{S_T0}, s{S_P}, 3"); a(f"v_add_u32 v{T+2}, s{S_T0}, v{T+2}")
    a(f"ds_write_b32 v{T+2}, v{S}")

def phase0b(a, vm):
    T = PK; F = RET
    a(f"ds_read_b128 v[{F}:{F+3}], v{V_M0}"); a(f"ds_read_b128 v[{F+4}:{F+7}], v{V_M0} offset:16")
    a(f"s_lshl_b32 s{S_T1}, s{S_E}, 8"); a(f"s_add_u32 s{S_T0}, s{S_CSO}, s{S_T1}")
    a(f"s_cmp_lg_u32 s{S_P}, 0"); a(f"s_cselect_b32 s{S_T0}, {OOB}, s{S_T0}")
    a(f"v_and_b32 v{T+6}, 31, v{V_LANE}"); a(f"v_lshlrev_b32 v{T+6}, 3, v{T+6}")
    a("s_waitcnt lgkmcnt(0)")
    a(f"v_add_f32 v{F}, v{F}, v{F+1}"); a(f"v_add_f32 v{F+2}, v{F+2}, v{F+3}"); a(f"v_add_f32 v{F+4}, v{F+4}, v{F+5}"); a(f"v_add_f32 v{F+6}, v{F+6}, v{F+7}")
    a(f"v_add_f32 v{F}, v{F}, v{F+2}"); a(f"v_add_f32 v{F+4}, v{F+4}, v{F+6}"); a(f"v_add_f32 v{F}, v{F}, v{F+4}")
    a(f"v_mov_b32 v{F+1}, s{S_TAG}")
    a(f"v_cmp_gt_u32 vcc, 32, v{V_LANE}"); a(f"s_and_saveexec_b64 s[{S_SAVE}:{S_SAVE+1}], vcc")
    a(f"buffer_store_dwordx2 v[{F}:{F+1}], v{T+6}, {WS}, s{S_T0} offen sc1"); vm.issue("cs")
    a(f"s_mov_b64 exec, s[{S_SAVE}:{S_SAVE+1}]")

def spin_check(a, out):
    a(f"s_add_u32 s{S_SPIN}, s{S_SPIN}, 1"); a(f"s_cmp_gt_u32 s{S_SPIN}, 200000"); a(f"s_cbranch_scc1 {out}")

GX = PK
GC = RET
def issue_granule_loads(a, vm=None):
    T = PP
    a(f"v_and_b32 v{T}, 31, v{V_LANE}"); a(f"v_lshlrev_b32 v{T+1}, 4, v{T}")
    a(f"s_lshl_b32 s{S_T0}, s{S_B32}, 9"); a(f"s_add_u32 s{S_T0}, s{S_T0}, {WS_XS}")
    a(f"buffer_load_dwordx4 v[{GX}:{GX+3}], v{T+1}, {WS}, s{S_T0} offen sc1")
    a(f"v_lshrrev_b32 v{T+2}, 5, v{V_LANE}"); a(f"v_lshlrev_b32 v{T+2}, 10, v{T+2}"); a(f"v_lshl_add_u32 v{T+2}, v{T}, 3, v{T+2}")
    for b in range(4):
        a(f"s_mul_i32 s{S_T0}, s{S_BMAT+b}, 24"); a(f"s_lshr_b32 s{S_T1}, s{S_BCOL+b}, 7"); a(f"s_add_u32 s{S_T0}, s{S_T0}, s{S_T1}")
        a(f"s_lshl_b32 s{S_T0}, s{S_T0}, 11")
        if b < 3: a(f"s_lshl_b32 s{S_T1}, s{S_E}, 8")
        else: a(f"s_and_b32 s{S_T1}, s{S_C}, 1"); a(f"s_lshl_b32 s{S_T1}, s{S_T1}, 8")
        a(f"s_add_u32 s{S_T0}, s{S_T0}, s{S_T1}"); a(f"s_add_u32 s{S_T0}, s{S_T0}, {WS_CSG}")
        for k in range(2):
            a(f"buffer_load_dwordx2 v[{GC+4*b+2*k}:{GC+4*b+2*k+1}], v{T+2}, {WS}, s{S_T0} offen offset:{512*k} sc1")
    if vm: vm.issue("gr", 9)

def stage_granules(a, vm):
    a(f"s_lshr_b32 s{S_T3}, s{S_WAVE}, 1")
    sel_block(a, S_T3, S_T2, S_T1)
    a(f"s_mul_i32 s{S_T0}, s{S_T2}, 24"); a(f"s_lshr_b32 s{S_T1}, s{S_T1}, 7"); a(f"s_add_u32 s{S_T0}, s{S_T0}, s{S_T1}"); a(f"s_lshl_b32 s{S_T0}, s{S_T0}, 11")
    a(f"s_and_b32 s{S_T1}, s{S_WAVE}, 1"); a(f"s_lshl_b32 s{S_T1}, s{S_T1}, 10"); a(f"s_add_u32 s{S_T0}, s{S_T0}, s{S_T1}"); a(f"s_add_u32 s{S_T0}, s{S_T0}, {WS_CSG}")
    a(f"s_add_u32 m0, s{S_M0W}, {L_GS}")
    a(f"s_lshl_b32 s{S_T1}, s{S_R}, 11"); a(f"s_add_u32 s{S_T1}, s{S_T1}, s{S_M0W}"); a(f"s_add_u32 s{S_T1}, s{S_T1}, {WS_XS}")
    a(f"buffer_load_dwordx4 v{V_L16}, {WS}, s{S_T0} offen sc1 lds")
    a(f"s_add_u32 m0, s{S_M0W}, {L_GS+8192}")
    a(f"s_cmp_ge_u32 s{S_WAVE}, 2"); a(f"s_cselect_b32 s{S_T1}, {OOB}, s{S_T1}")
    a(f"s_cselect_b32 m0, {19*SLOT+4096}, m0") if False else None
    a(f"buffer_load_dwordx4 v{V_L16}, {WS}, s{S_T1} offen sc1 lds")
    vm.issue("gr", 2)

def read_staged_granules(a):
    T = PP
    a(f"v_and_b32 v{T}, 31, v{V_LANE}"); a(f"v_lshlrev_b32 v{T+1}, 4, v{T}")
    a(f"s_lshl_b32 s{S_T0}, s{S_P}, 9"); a(f"s_add_u32 s{S_T0}, s{S_T0}, {L_GS+8192}"); a(f"v_add_u32 v{T+1}, s{S_T0}, v{T+1}")
    a(f"ds_read_b128 v[{GX}:{GX+3}], v{T+1}")
    a(f"v_lshrrev_b32 v{T+2}, 5, v{V_LANE}"); a(f"v_lshlrev_b32 v{T+2}, 10, v{T+2}"); a(f"v_lshl_add_u32 v{T+2}, v{T}, 3, v{T+2}")
    a(f"s_lshl_b32 s{S_T0}, s{S_E}, 8"); a(f"v_add_u32 v{T+3}, s{S_T0}, v{T+2}")
    a(f"s_and_b32 s{S_T0}, s{S_C}, 1"); a(f"s_lshl_b32 s{S_T0}, s{S_T0}, 8"); a(f"v_add_u32 v{T+2}, s{S_T0}, v{T+2}")
    for b in range(4):
        for k in range(2):
            a(f"ds_read_b64 v[{GC+4*b+2*k}:{GC+4*b+2*k+1}], v{T+3 if b < 3 else T+2} offset:{L_GS + b*2048 + k*512}")

def consume_granules(a):
    T = PP
    lp, lo = "L_gr_chk", "L_gr_ok"
    a(f"s_mov_b32 s{S_SPIN}, 0")
    a.label(lp)
    a(f"v_xor_b32 v{T}, s{S_TAG}, v{GX+2}"); a(f"v_xor_b32 v{T+1}, s{S_TAG}, v{GX+3}"); a(f"v_or_b32 v{T}, v{T}, v{T+1}")
    for q in range(8):
        a(f"v_xor_b32 v{T+1}, s{S_TAG}, v{GC+2*q+1}"); a(f"v_or_b32 v{T}, v{T}, v{T+1}")
    a(f"v_cmp_ne_u32 vcc, 0, v{T}")
    a(f"s_cbranch_vccz {lo}")
    spin_check(a, lo)
    issue_granule_loads(a)
    a("s_waitcnt vmcnt(0)")
    a(f"s_branch {lp}")
    a.label(lo)
    a(f"v_mov_b32 v{C_R}, v{GX+1}")
    a(f"v_rcp_f32 v{C_S}, v{GX+1}")
    a(f"v_mul_f32 v{C_B}, {hexf(K1)}, v{C_R}")
    a(f"v_mul_f32 v{T}, v{C_R}, v{C_R}"); a(f"v_mul_f32 v{T}, v{T}, v{C_R}"); a(f"v_mul_f32 v{C_A}, {hexf(K2)}, v{T}")
    a(f"v_mul_f32 v{C_RL}, {hexf(LOG2E)}, v{C_R}")
    a(f"v_cmp_gt_u32 vcc, 32, v{V_LANE}"); a(f"v_cndmask_b32 v{T}, 0, v{GX}, vcc")
    a(f"v_cvt_pk_bf16_f32 v{T+1}, v{T}, v{T}"); a(f"v_lshlrev_b32 v{T+1}, 16, v{T+1}"); a(f"v_sub_f32 v{T+2}, v{T}, v{T+1}")
    a(f"v_cvt_pk_bf16_f32 v{XAUG}, v{T}, v{T+2}"); a(f"v_cvt_pk_bf16_f32 v{XAUG+1}, v{T}, 0")
    for b in range(4):
        a(f"v_add_f32 v{T}, v{GC+4*b}, v{GC+4*b+2}"); a(f"v_mov_b32 v{T+1}, v{T}")
        a(f"v_permlane32_swap_b32 v{T}, v{T+1}"); a(f"v_add_f32 v{T}, v{T}, v{T+1}")
        a(f"v_cvt_pk_bf16_f32 v{CSA+2*b}, v{T}, v{T}"); a(f"v_lshlrev_b32 v{T+1}, 16, v{CSA+2*b}"); a(f"v_sub_f32 v{T+1}, v{T}, v{T+1}")
        a(f"v_cvt_pk_bf16_f32 v{CSA+2*b+1}, v{T+1}, 0")

def aug_mfma(a):
    a(f"v_mfma_f32_32x32x16_bf16 v[{ACC}:{ACC+15}], v[{WAUG}:{WAUG+3}], v[{XAUG}:{XAUG+3}], v[{ACC}:{ACC+15}]")

def pass1(a, vm):
    a(f"s_lshl_b32 s{S_T0}, s{S_E}, 6")
    a(f"v_xor_b32 v{V_WAA}, s{S_T0}, v{V_WA}"); a(f"v_add_u32 v{V_WAA}, {8*SLOT}, v{V_WAA}")
    def compute(st):
        wb = WF + 16*(st & 1)
        for kk in range(4):
            ks = 4*st + kk
            c = "0" if ks == 0 else f"v[{ACC}:{ACC+15}]"
            a(f"v_mfma_f32_32x32x16_bf16 v[{ACC}:{ACC+15}], v[{wb+4*kk}:{wb+4*kk+3}], v[{XF+4*ks}:{XF+4*ks+3}], {c}")
    for st in range(8):
        vm.wait(a, {f"x{st}", f"w{st}"} | ({"gr"} if st == 7 else set()) | ({"cu", "xr"} if st == 0 else set()), "lgkmcnt(0)")
        a("s_barrier")
        if st in (0, 4): stamp(a, {0: 2, 4: 3}[st])
        if 'pst' in OPT: stamp(a, 20+st)
        if st > 0:
            d = (2*(st & 3) - 2*((st-1) & 3)) * SLOT
            for kk in range(4):
                if d >= 0: a(f"v_add_u32 v{V_XA+kk}, {d}, v{V_XA+kk}")
                else: a(f"v_subrev_u32 v{V_XA+kk}, {-d}, v{V_XA+kk}")
        wb = WF + 16*(st & 1)
        for kk in range(4):
            ks = 4*st + kk
            a(f"ds_read_b128 v[{XF+4*ks}:{XF+4*ks+3}], v{V_XA+kk}")
            off = (st & 3)*SLOT + kk*2048
            a(f"ds_read_b64_tr_b16 v[{wb+4*kk}:{wb+4*kk+1}], v{V_WAA} offset:{off}")
            a(f"ds_read_b64_tr_b16 v[{wb+4*kk+2}:{wb+4*kk+3}], v{V_WAA} offset:{off+512}")
        if st > 0: compute(st-1)
        if st + 3 < 8:
            sl = st + 3
            x_dma(a, sl, 2*(sl & 3)); vm.issue(f"x{sl}", 2); w_dma(a, sl, 8+(sl & 3)); vm.issue(f"w{sl}")
        if st == 0: finish_ws_srd(a); phase0a(a, vm)
        if st == 2: phase0b(a, vm)
        if st == 3: issue_clears_early(a, vm)
        if st == 5:
            stage_granules(a, vm)
            set_wsrd(a, 1)
            for m in (0, 1, 2): w_dma(a, m, B1_A+m)
            vm.issue("b1", 3)
        if st == 6:
            w_dma(a, 3, B1_A+3)
            for m in (4, 5): w_dma(a, m, B1_B+m-4)
            vm.issue("b1", 3)
        if st == 7:
            for m in (6, 7): w_dma(a, m, B1_B+m-4)
            vm.issue("b1", 2)
            read_staged_granules(a)
            a("s_waitcnt lgkmcnt(0)")
            consume_granules(a)
    a("s_waitcnt lgkmcnt(0)")
    compute(7)
    a(f"v_mov_b32 v{WAUG}, v{CSA}"); a(f"v_mov_b32 v{WAUG+1}, v{CSA+1}")
    aug_mfma(a)
    a("s_barrier")

def m_phase(a):
    PD = 6
    a(f"s_lshl_b32 s{S_T0}, s{S_ECUR}, 6")
    a(f"v_xor_b32 v{V_WAA}, s{S_T0}, v{V_WA}")
    a(f"v_add_u32 v{V_WAB}, s{S_LB}, v{V_WAA}"); a(f"v_add_u32 v{V_WAA}, s{S_LA}, v{V_WAA}")
    def rd(ks):
        base = V_WAA if ks < 16 else V_WAB
        off = ((ks >> 2) & 3) * SLOT + (ks & 3) * 2048
        b = WF + 4*(ks & 7)
        a(f"ds_read_b64_tr_b16 v[{b}:{b+1}], v{base} offset:{off}")
        a(f"ds_read_b64_tr_b16 v[{b+2}:{b+3}], v{base} offset:{off+512}")
    for ks in range(PD): rd(ks)
    a(f"s_cmp_eq_u32 s{S_CUR}, 2"); a("s_cselect_b64 vcc, -1, 0")
    a(f"v_cndmask_b32 v{WAUG}, v{CSA+2}, v{CSA+4}, vcc"); a(f"v_cndmask_b32 v{WAUG+1}, v{CSA+3}, v{CSA+5}, vcc")
    a(f"s_cmp_eq_u32 s{S_CUR}, 3"); a("s_cselect_b64 vcc, -1, 0")
    a(f"v_cndmask_b32 v{WAUG}, v{WAUG}, v{CSA+6}, vcc"); a(f"v_cndmask_b32 v{WAUG+1}, v{WAUG+1}, v{CSA+7}, vcc")
    for ks in range(32):
        if ks + PD < 32:
            rd(ks+PD); a(f"s_waitcnt lgkmcnt({2*PD})")
        else:
            a(f"s_waitcnt lgkmcnt({2*(31-ks)})")
        b = WF + 4*(ks & 7)
        c = "0" if ks == 0 else f"v[{ACC}:{ACC+15}]"
        a(f"v_mfma_f32_32x32x16_bf16 v[{ACC}:{ACC+15}], v[{b}:{b+3}], v[{XF+4*ks}:{XF+4*ks+3}], {c}")
    aug_mfma(a)

def gelu(a, dst):
    T = TMP
    for g in range(4):
        r = [ACC+4*g+i for i in range(4)]
        t = [T+4*(g&1)+i for i in range(4)]
        u = [T+8+4*(g&1)+i for i in range(4)]
        for i in range(4): a(f"v_mul_f32 v{t[i]}, v{r[i]}, v{r[i]}")
        for i in range(4): a(f"v_fma_f32 v{t[i]}, v{t[i]}, v{C_A}, v{C_B}")
        for i in range(4): a(f"v_mul_f32 v{t[i]}, v{r[i]}, v{t[i]}")
        for i in range(4): a(f"v_exp_f32 v{u[i]}, v{t[i]}")
        for i in range(4): a(f"v_fma_f32 v{u[i]}, v{u[i]}, v{C_S}, v{C_S}")
        for i in range(4): a(f"v_rcp_f32 v{u[i]}, v{u[i]}")
        for i in range(4): a(f"v_mul_f32 v{dst+4*g+i}, v{r[i]}, v{u[i]}")
def phi(a, bursts=False):
    T = TMP
    for g in range(4):
        if bursts:
            l = a.newlabel("L_b3")
            a(f"s_cmp_eq_u32 s{S_B3F}, 1"); a(f"s_cbranch_scc0 {l}")
            for m in (2*g, 2*g+1): w_dma2(a, m, B1_A+m)
            a.label(l)
        r = [ACC+4*g+i for i in range(4)]
        t = [T+4*(g&1)+i for i in range(4)]
        for i in range(4): a(f"v_min_f32 v{t[i]}, 0, v{r[i]}")
        for i in range(4): a(f"v_mul_f32 v{t[i]}, v{t[i]}, v{C_RL}")
        for i in range(4): a(f"v_exp_f32 v{t[i]}, v{t[i]}")
        for i in range(4): a(f"v_max_f32 v{r[i]}, 0, v{r[i]}")
        for i in range(4): a(f"v_add_f32 v{t[i]}, s{S_EPS6}, v{t[i]}")
        for i in range(4): a(f"v_fma_f32 v{r[i]}, v{r[i]}, v{C_R}, v{t[i]}")
def pack(a, src, dst):
    for q in range(8): a(f"v_cvt_pk_bf16_f32 v{dst+q}, v{src+2*q}, v{src+2*q+1}")
def transpose(a, P, D, R):
    a(f"v_mfma_f32_32x32x16_bf16 v[{D}:{D+15}], v[{P}:{P+3}], v[{I0}:{I0+3}], 0")
    a(f"v_mfma_f32_32x32x16_bf16 v[{D}:{D+15}], v[{P+4}:{P+7}], v[{I1}:{I1+3}], v[{D}:{D+15}]")
    pack(a, D, R)

def e_phase(a, btyp, bidx):
    T = TMP
    lq, lk, lvv, lg2, ldone, lp1 = ["L_e_" + x for x in ("q", "k", "v", "g2", "done", "g2p1")]
    a(f"s_cmp_eq_u32 s{btyp}, {T_V}"); a(f"s_cbranch_scc1 {lvv}")
    a(f"s_cmp_ge_u32 s{btyp}, {T_Q}"); a(f"s_cbranch_scc1 {lq}")
    a(f"s_cmp_eq_u32 s{btyp}, {T_G2}"); a(f"s_cbranch_scc1 {lg2}")
    a(f"s_mul_i32 s{S_T0}, s{S_B32}, 56"); a(f"s_lshl_b32 s{S_T1}, s{bidx}, 2"); a(f"s_add_u32 s{S_T0}, s{S_T0}, s{S_T1}")
    a(f"s_lshl_b32 s{S_T1}, s{S_ECUR}, 1"); a(f"s_add_u32 s{S_T0}, s{S_T0}, s{S_T1}")
    a(f"s_lshl_b32 s{S_T0}, s{S_T0}, 10"); a(f"s_add_u32 s{S_T0}, s{S_T0}, {WS_Z1}")
    gelu(a, ACC)
    pack(a, ACC, PP)
    for gsel in range(2):
        b = PP + 4*gsel
        a(f"v_permlane16_swap_b32 v{b}, v{b+2}"); a(f"v_permlane16_swap_b32 v{b+1}, v{b+3}")
    a(f"buffer_store_dwordx4 v[{PP}:{PP+3}], v{V_Z1O}, {WS}, s{S_T0} offen sc1")
    a(f"buffer_store_dwordx4 v[{PP+4}:{PP+7}], v{V_Z1O}, {WS}, s{S_T0} offen offset:1024 sc1")
    a(f"s_branch {ldone}")
    a.label(lg2)
    gelu(a, RET)
    a(f"v_add_f32 v{T}, v{RET}, v{RET+1}"); a(f"v_mul_f32 v{T+1}, v{RET}, v{RET}")
    a(f"v_add_f32 v{T+2}, v{RET+2}, v{RET+3}"); a(f"v_mul_f32 v{T+3}, v{RET+1}, v{RET+1}")
    for r in range(2, 16, 2):
        a(f"v_fmac_f32 v{T+1}, v{RET+r}, v{RET+r}"); a(f"v_fmac_f32 v{T+3}, v{RET+r+1}, v{RET+r+1}")
        if r >= 4:
            tgt = T if (r & 2) == 0 else T+2
            a(f"v_add_f32 v{T+4}, v{RET+r}, v{RET+r+1}"); a(f"v_add_f32 v{tgt}, v{tgt}, v{T+4}")
    a(f"v_add_f32 v{T}, v{T}, v{T+2}"); a(f"v_add_f32 v{T+1}, v{T+1}, v{T+3}")
    a(f"v_mov_b32 v{T+2}, v{T}"); a(f"v_mov_b32 v{T+3}, v{T+1}")
    a(f"v_permlane32_swap_b32 v{T}, v{T+2}"); a(f"v_permlane32_swap_b32 v{T+1}, v{T+3}")
    a(f"v_add_f32 v{T}, v{T}, v{T+2}"); a(f"v_add_f32 v{T+1}, v{T+1}, v{T+3}")
    a(f"v_and_b32 v{T+4}, 31, v{V_LANE}"); a(f"v_lshlrev_b32 v{T+4}, 3, v{T+4}")
    a(f"s_lshl_b32 s{S_T0}, s{S_P}, 8"); a(f"s_add_u32 s{S_T0}, s{S_T0}, {L_ST2}"); a(f"v_add_u32 v{T+5}, s{S_T0}, v{T+4}")
    a(f"s_cmp_eq_u32 s{S_E}, 1"); a(f"s_cbranch_scc1 {lp1}")
    a(f"ds_write_b64 v{T+5}, v[{T}:{T+1}]")
    a(f"s_branch {ldone}")
    a.label(lp1)
    a(f"ds_read_b64 v[{T+6}:{T+7}], v{T+5}")
    a(f"s_lshl_b32 s{S_T0}, s{S_R}, 4"); a(f"s_add_u32 s{S_T0}, s{S_T0}, s{S_C}"); a(f"s_lshl_b32 s{S_T0}, s{S_T0}, 10")
    a(f"s_lshl_b32 s{S_T1}, s{S_P}, 8"); a(f"s_add_u32 s{S_T0}, s{S_T0}, s{S_T1}"); a(f"s_add_u32 s{S_T0}, s{S_T0}, {WS_STATS}")
    a("s_waitcnt lgkmcnt(0)")
    a(f"v_add_f32 v{T}, v{T}, v{T+6}"); a(f"v_add_f32 v{T+1}, v{T+1}, v{T+7}")
    a(f"v_cmp_gt_u32 vcc, 32, v{V_LANE}"); a(f"s_and_saveexec_b64 s[{S_SAVE}:{S_SAVE+1}], vcc")
    a(f"buffer_store_dwordx2 v[{T}:{T+1}], v{T+4}, {WS}, s{S_T0} offen sc1")
    a(f"s_mov_b64 exec, s[{S_SAVE}:{S_SAVE+1}]")
    a(f"s_branch {ldone}")
    a.label(lq)
    phi(a, bursts=True)
    pack(a, ACC, PP)
    a(f"s_cmp_eq_u32 s{btyp}, {T_K}"); a(f"s_cbranch_scc1 {lk}")
    a(f"s_lshl_b32 s{S_T0}, s{S_B32}, 5"); a(f"s_lshl_b32 s{S_T1}, s{bidx}, 2"); a(f"s_add_u32 s{S_T0}, s{S_T0}, s{S_T1}")
    a(f"s_lshl_b32 s{S_T1}, s{S_ECUR}, 1"); a(f"s_add_u32 s{S_T0}, s{S_T0}, s{S_T1}")
    a(f"s_lshl_b32 s{S_T0}, s{S_T0}, 10"); a(f"s_add_u32 s{S_T0}, s{S_T0}, {WS_PQ}")
    a(f"buffer_store_dwordx4 v[{PP}:{PP+3}], v{V_L16}, {WS}, s{S_T0} offen sc1")
    a(f"buffer_store_dwordx4 v[{PP+4}:{PP+7}], v{V_L16}, {WS}, s{S_T0} offen offset:1024 sc1")
    a(f"s_branch {ldone}")
    a.label(lk)
    a(f"s_lshl_b32 s{S_T0}, s{S_WAVE}, 8"); a(f"s_add_u32 s{S_T0}, s{S_T0}, {L_ZW}")
    a(f"v_lshlrev_b32 v{T+2}, 2, v{V_LANE}"); a(f"v_add_u32 v{T+2}, s{S_T0}, v{T+2}")
    transpose(a, PP, WF, PK)
    for q in range(8): a(f"v_add_f32 v{WF+q}, v{WF+q}, v{WF+8+q}")
    for q in range(4): a(f"v_add_f32 v{WF+q}, v{WF+q}, v{WF+4+q}")
    a(f"v_add_f32 v{WF}, v{WF}, v{WF+2}"); a(f"v_add_f32 v{WF+1}, v{WF+1}, v{WF+3}"); a(f"v_add_f32 v{T}, v{WF}, v{WF+1}")
    a(f"ds_write_b32 v{T+2}, v{T}")
    a(f"s_branch {ldone}")
    a.label(lvv)
    for r in range(16): a(f"v_mul_f32 v{ACC+r}, v{ACC+r}, v{C_R}")
    pack(a, ACC, PP)
    transpose(a, PP, WF, PP)
    a(f"v_mfma_f32_32x32x16_bf16 v[{WF}:{WF+15}], v[{PK}:{PK+3}], v[{PP}:{PP+3}], 0")
    a(f"v_mfma_f32_32x32x16_bf16 v[{WF}:{WF+15}], v[{PK+4}:{PK+7}], v[{PP+4}:{PP+7}], v[{WF}:{WF+15}]")
    a(f"v_and_b32 v{T}, 16, v{V_LANE}"); a(f"v_cmp_eq_u32 vcc, 0, v{T}")
    a(f"s_lshl_b32 s{S_T0}, s{S_WAVE}, 11"); a(f"s_add_u32 s{S_T0}, s{S_T0}, {L_KVW}")
    a(f"v_lshlrev_b32 v{T+9}, 2, v{V_LANE}"); a(f"v_add_u32 v{T+9}, s{S_T0}, v{T+9}")
    for r in range(8): a(f"v_cndmask_b32 v{T+1+r}, v{WF+8+r}, v{WF+r}, vcc")
    for r in range(8): a(f"ds_write_b32 v{T+9}, v{T+1+r} offset:{256*r}")
    a.label(ldone)

def stage_stats(a):
    T = V_M1
    a(f"v_lshrrev_b32 v{T}, 4, v{V_LANE}"); a(f"v_lshlrev_b32 v{T}, 10, v{T}"); a(f"v_and_b32 v{T+1}, 15, v{V_LANE}"); a(f"v_lshl_add_u32 v{T}, v{T+1}, 4, v{T}")
    a(f"s_lshl_b32 s{S_T0}, s{S_R}, 14"); a(f"s_add_u32 s{S_T0}, s{S_T0}, {WS_STATS}")
    for p in range(4):
        for k in range(4):
            a(f"s_add_u32 s{S_T1}, s{S_T0}, {p*256 + k*4096}")
            a(f"s_mov_b32 m0, {L_SS + p*3584 + k*1024}")
            if k == 3: a("s_mov_b32 exec_hi, 0")
            a(f"buffer_load_dwordx4 v{T}, {WS}, s{S_T1} offen sc1 lds")
            if k == 3: a("s_mov_b64 exec, -1")

def n_phase(a):
    T = TMP
    lskip = "L_n_skip"
    a(f"s_cmp_lg_u32 s{S_BTYP}, {T_G2}"); a(f"s_cbranch_scc1 {lskip}")
    a(f"v_lshrrev_b32 v{T+14}, 5, v{V_LANE}"); a(f"v_mul_u32_u24 v{T+14}, {7*256}, v{T+14}")
    a(f"v_and_b32 v{T+15}, 31, v{V_LANE}"); a(f"v_lshl_add_u32 v{T+14}, v{T+15}, 3, v{T+14}")
    a(f"s_mul_i32 s{S_T0}, s{S_P}, 3584"); a(f"s_add_u32 s{S_T0}, s{S_T0}, {L_SS}"); a(f"v_add_u32 v{T+14}, s{S_T0}, v{T+14}")
    for k in range(7): a(f"ds_read_b64 v[{T+2*k}:{T+2*k+1}], v{T+14} offset:{k*256}")
    a("s_waitcnt lgkmcnt(0)")
    a(f"v_max3_u32 v{T+15}, v{T}, v{T+1}, v{T+2}")
    for k in range(3, 13, 2): a(f"v_max3_u32 v{T+15}, v{T+15}, v{T+k}, v{T+k+1}")
    a(f"v_max_u32 v{T+15}, v{T+15}, v{T+13}")
    a(f"v_cmp_eq_u32 vcc, -1, v{T+15}")
    a("s_cbranch_vccz L_n_ok")
    a(f"v_lshrrev_b32 v{T+14}, 5, v{V_LANE}"); a(f"v_mul_u32_u24 v{T+14}, 7168, v{T+14}")
    a(f"v_and_b32 v{T+15}, 31, v{V_LANE}"); a(f"v_lshl_add_u32 v{T+14}, v{T+15}, 3, v{T+14}")
    a(f"s_lshl_b32 s{S_T0}, s{S_R}, 14"); a(f"s_lshl_b32 s{S_T1}, s{S_P}, 8"); a(f"s_add_u32 s{S_T0}, s{S_T0}, s{S_T1}"); a(f"s_add_u32 s{S_T0}, s{S_T0}, {WS_STATS}")
    a(f"s_add_u32 s{S_T1}, s{S_T0}, 4096")
    lp, lo = "L_n_poll", "L_n_ok"
    a(f"s_mov_b32 s{S_SPIN}, 0")
    a.label(lp)
    for k in range(7):
        so = S_T0 if k < 4 else S_T1
        a(f"buffer_load_dwordx2 v[{T+2*k}:{T+2*k+1}], v{T+14}, {WS}, s{so} offen offset:{(k&3)*1024} sc1")
    a("s_waitcnt vmcnt(0)")
    a(f"v_max3_u32 v{T+15}, v{T}, v{T+1}, v{T+2}")
    for k in range(3, 13, 2): a(f"v_max3_u32 v{T+15}, v{T+15}, v{T+k}, v{T+k+1}")
    a(f"v_max_u32 v{T+15}, v{T+15}, v{T+13}")
    a(f"v_cmp_eq_u32 vcc, -1, v{T+15}")
    spin_check(a, lo)
    a(f"s_cbranch_vccnz {lp}")
    a.label(lo)
    for k in range(1, 7):
        a(f"v_add_f32 v{T}, v{T}, v{T+2*k}"); a(f"v_add_f32 v{T+1}, v{T+1}, v{T+2*k+1}")
    a(f"v_mov_b32 v{T+2}, v{T}"); a(f"v_mov_b32 v{T+3}, v{T+1}")
    a(f"v_permlane32_swap_b32 v{T}, v{T+2}"); a(f"v_permlane32_swap_b32 v{T+1}, v{T+3}")
    a(f"v_add_f32 v{T}, v{T}, v{T+2}"); a(f"v_add_f32 v{T+1}, v{T+1}, v{T+3}")
    a(f"v_mul_f32 v{T}, {hexf(1/896)}, v{T}"); a(f"v_mul_f32 v{T+1}, {hexf(1/896)}, v{T+1}")
    a(f"v_fma_f32 v{T+1}, -v{T}, v{T}, v{T+1}"); a(f"v_max_f32 v{T+1}, 0, v{T+1}"); a(f"v_add_f32 v{T+1}, {hexf(1e-5)}, v{T+1}")
    a(f"v_rsq_f32 v{T+1}, v{T+1}")
    a(f"s_lshl_b32 s{S_T0}, s{S_C}, 2"); a(f"s_lshl_b32 s{S_T1}, s{S_E}, 1"); a(f"s_add_u32 s{S_T0}, s{S_T0}, s{S_T1}")
    a(f"s_lshl_b32 s{S_T0}, s{S_T0}, 6"); a(f"s_add_u32 s{S_T0}, s{S_T0}, s{S_B32}"); a(f"s_lshl_b32 s{S_T0}, s{S_T0}, 10"); a(f"s_add_u32 s{S_T0}, s{S_T0}, {WS_Z2N}")
    a(f"v_mul_f32 v{T}, v{T}, v{T+1}"); a(f"v_sub_f32 v{T}, 0, v{T}")
    for r in range(16): a(f"v_fma_f32 v{RET+r}, v{RET+r}, v{T+1}, v{T}")
    pack(a, RET, PP)
    transpose(a, PP, WF, PP)
    a(f"v_permlane32_swap_b32 v{PP}, v{PP+2}"); a(f"v_permlane32_swap_b32 v{PP+1}, v{PP+3}")
    a(f"v_permlane32_swap_b32 v{PP+4}, v{PP+6}"); a(f"v_permlane32_swap_b32 v{PP+5}, v{PP+7}")
    a(f"buffer_store_dwordx4 v[{PP}:{PP+3}], v{V_Z2O}, {WS}, s{S_T0} offen sc1")
    a(f"buffer_store_dwordx4 v[{PP+4}:{PP+7}], v{V_Z2O}, {WS}, s{S_T0} offen offset:512 sc1")
    a.label(lskip)

def check_flags(a, base, tag):
    lp, lo = f"L_fc{tag}_chk", f"L_fc{tag}_ok"
    a(f"s_mov_b32 s{S_SPIN}, 0")
    a.label(lp)
    a(f"v_xor_b32 v{V_FL}, s{S_TAG}, v{V_FL}"); a(f"v_xor_b32 v{V_FL+1}, s{S_TAG}, v{V_FL+1}"); a(f"v_xor_b32 v{V_FL+2}, s{S_TAG}, v{V_FL+2}"); a(f"v_xor_b32 v{V_FL+3}, s{S_TAG}, v{V_FL+3}")
    a(f"v_or_b32 v{V_FL}, v{V_FL}, v{V_FL+1}"); a(f"v_or3_b32 v{V_FL}, v{V_FL}, v{V_FL+2}, v{V_FL+3}")
    a(f"v_cmp_ne_u32 vcc, 0, v{V_FL}")
    a(f"s_cbranch_vccz {lo}")
    spin_check(a, lo)
    issue_flag_loads(a, base)
    a("s_waitcnt vmcnt(0)")
    a(f"s_branch {lp}")
    a.label(lo)
def issue_flag_loads(a, base):
    a(f"v_lshlrev_b32 v{V_M1}, 7, v{V_LANE}"); a(f"s_mov_b32 s{S_T0}, {base}")
    a(f"buffer_load_dwordx4 v[{V_FL}:{V_FL+3}], v{V_M1}, {WS}, s{S_T0} offen sc1")

def phaseA_main(a):
    T = TMP
    a(f"s_mov_b32 s{S_EPS6}, {hexf(1e-6)}")
    a(f"s_mov_b32 s{S_I}, 1"); a(f"s_mov_b32 s{S_CUR}, 0"); a(f"s_mov_b32 s{S_ECUR}, s{S_E}")
    a(f"s_mov_b32 s{S_CT}, s{S_BTYP}"); a(f"s_mov_b32 s{S_CI}, s{S_BIDX}")
    a(f"s_lshl_b32 s{S_PH}, s{S_E}, 1"); a(f"s_mov_b32 s{S_PINIT}, 0"); a(f"s_mov_b32 s{S_B3F}, 0"); a(f"s_mov_b32 s{S_NDONE}, 0")
    a(f"s_cmp_lt_u32 s{S_C}, 8"); a(f"s_cselect_b32 s{S_NI}, 6, 7")
    flag_store(a, WS_FINIT)
    a(f"s_cmp_eq_u32 s{S_E}, 1"); a("s_cbranch_scc0 L_A_hend")
    set_wsrd_p1(a, 2)
    for m in range(4): w_dma2(a, m, B2_A+m)
    for m in range(4, 8): w_dma2(a, m, B2_B+m-4)
    a("s_branch L_A_hend")
    a.label("L_A_loop")
    a(f"s_cmp_eq_u32 s{S_I}, 3"); a("s_cbranch_scc1 L_A_h3")
    a(f"s_cmp_eq_u32 s{S_I}, 4"); a("s_cbranch_scc1 L_A_h4")
    a(f"s_cmp_eq_u32 s{S_I}, 6"); a("s_cbranch_scc1 L_A_h6")
    a(f"s_cmp_eq_u32 s{S_I}, 5"); a("s_cbranch_scc0 L_A_hend")
    a(f"s_cmp_eq_u32 s{S_WAVE}, 0"); a("s_cbranch_scc0 L_A_hend")
    a("s_waitcnt vmcnt(0)")
    check_flags(a, WS_FINIT, "i")
    a(f"s_cmp_ge_u32 s{S_C}, 14"); a("s_cbranch_scc1 L_A_hend")
    stage_stats(a)
    a("s_branch L_A_hend")
    a.label("L_A_h6")
    a(f"s_mov_b32 s{S_NDONE}, 1")
    a("s_branch L_A_n")
    a.label("L_A_h3")
    a(f"s_cmp_eq_u32 s{S_WAVE}, 0"); a("s_cbranch_scc0 L_A_hend")
    issue_flag_loads(a, WS_FINIT)
    a("s_branch L_A_hend")
    a.label("L_A_h4")
    a(f"s_cmp_eq_u32 s{S_E}, 1"); a("s_cbranch_scc0 L_A_hend")
    a(f"s_cmp_lt_u32 s{S_C}, 8"); a("s_cbranch_scc1 L_A_hend")
    set_wsrd_p1(a, 3)
    a(f"s_mov_b32 s{S_B3F}, 1")
    a.label("L_A_hend")
    stamp_dyn(a, 32)
    a(f"s_cmp_eq_u32 s{S_PH}, 1"); a("s_cbranch_scc1 L_A_M")
    a(f"s_cmp_eq_u32 s{S_PH}, 2"); a("s_cbranch_scc1 L_A_idle")
    e_phase(a, S_CT, S_CI)
    a(f"s_mov_b32 s{S_B3F}, 0")
    a(f"s_add_u32 s{S_CUR}, s{S_CUR}, 1")
    a(f"s_cmp_lt_u32 s{S_CUR}, s{S_NB}"); a(f"s_cselect_b32 s{S_PH}, 1, 3")
    a("s_branch L_A_w")
    a.label("L_A_M")
    a(f"s_mov_b32 s{S_LA}, {B1_A*SLOT}"); a(f"s_mov_b32 s{S_LB}, {B1_B*SLOT}")
    a(f"s_and_b32 s{S_T0}, s{S_C}, 1")
    a(f"s_cmp_eq_u32 s{S_CUR}, 2")
    a(f"s_cselect_b32 s{S_LA}, {B2_A*SLOT}, s{S_LA}"); a(f"s_cselect_b32 s{S_LB}, {B2_B*SLOT}, s{S_LB}")
    a(f"s_cselect_b32 s{S_CT}, s{S_BTYP+2}, s{S_BTYP+1}"); a(f"s_cselect_b32 s{S_CI}, s{S_BIDX+2}, s{S_BIDX+1}")
    a(f"s_cmp_eq_u32 s{S_CUR}, 3")
    a(f"s_cselect_b32 s{S_CT}, s{S_BTYP+3}, s{S_CT}"); a(f"s_cselect_b32 s{S_CI}, s{S_BIDX+3}, s{S_CI}")
    a(f"s_cselect_b32 s{S_ECUR}, s{S_T0}, s{S_E}")
    if 'noprio' not in OPT: a("s_setprio 1")
    m_phase(a)
    if 'noprio' not in OPT: a("s_setprio 0")
    a(f"s_mov_b32 s{S_PH}, 0")
    stamp_dyn(a, 48)
    a(f"s_cmp_eq_u32 s{S_I}, 3"); a("s_cbranch_scc1 L_A_mw3")
    a(f"s_cmp_eq_u32 s{S_I}, 5"); a("s_cbranch_scc0 L_A_bar")
    a(f"s_cmp_lt_u32 s{S_C}, 8"); a("s_cbranch_scc1 L_A_bar")
    a("s_waitcnt vmcnt(2)")
    a("s_branch L_A_bar")
    a.label("L_A_mw3")
    a("s_waitcnt vmcnt(3)"); a("s_branch L_A_bar")
    a.label("L_A_idle")
    a(f"s_mov_b32 s{S_PH}, 0")
    a.label("L_A_w")
    stamp_dyn(a, 48)
    a(f"s_cmp_eq_u32 s{S_I}, 1"); a("s_cbranch_scc1 L_A_w1")
    a(f"s_cmp_eq_u32 s{S_I}, 5"); a("s_cbranch_scc0 L_A_bar")
    a(f"s_cmp_eq_u32 s{S_WAVE}, 0"); a("s_cbranch_scc0 L_A_bar")
    a(f"s_cmp_lt_u32 s{S_C}, 8"); a("s_cbranch_scc1 L_A_w50")
    a("s_waitcnt vmcnt(2)"); a("s_branch L_A_bar")
    a.label("L_A_w50")
    a("s_waitcnt vmcnt(0)"); a("s_branch L_A_bar")
    a.label("L_A_w1")
    a(f"s_cmp_eq_u32 s{S_E}, 1"); a("s_cbranch_scc1 L_A_w1b")
    a("s_waitcnt vmcnt(1)"); a("s_branch L_A_bar")
    a.label("L_A_w1b")
    a("s_waitcnt vmcnt(17)")
    a(f"s_cmp_lt_u32 s{S_C}, 8"); a("s_cbranch_scc0 L_A_t2")
    touch_wsp(a, 0)
    a("s_branch L_A_bar")
    a.label("L_A_t2")
    touch_wsp(a, 1)
    a.label("L_A_bar")
    a(f"s_bitcmp1_b32 s{S_I}, 0"); a("s_cbranch_scc0 L_A_nobar")
    a(f"s_cmp_eq_u32 s{S_I}, 7"); a("s_cbranch_scc1 L_A_nobar")
    a("s_waitcnt lgkmcnt(0)")
    a("s_barrier")
    a.label("L_A_nobar")
    stamp_dyn(a, 16)
    a(f"s_add_u32 s{S_I}, s{S_I}, 1")
    a(f"s_cmp_gt_u32 s{S_I}, s{S_NI}"); a("s_cbranch_scc1 L_A_done")
    a(f"s_cmp_eq_u32 s{S_PH}, 3"); a("s_cbranch_scc0 L_A_loop")
    a.label("L_A_done")
    a(f"s_cmp_eq_u32 s{S_NDONE}, 1"); a("s_cbranch_scc1 L_A_d1")
    a(f"s_mov_b32 s{S_NDONE}, 2")
    a.label("L_A_n")
    n_phase(a)
    a(f"s_cmp_eq_u32 s{S_NDONE}, 1"); a("s_cbranch_scc1 L_A_hend")
    a.label("L_A_d1")
    a(f"s_cmp_lt_u32 s{S_C}, 8"); a("s_cbranch_scc0 L_A_d1b")
    a(f"s_cmp_eq_u32 s{S_E}, 0"); a("s_cbranch_scc0 L_A_d2")
    touch_cw(a)
    a("s_branch L_A_d2")
    a.label("L_A_d1b")
    a(f"s_cmp_eq_u32 s{S_WAVE}, 7"); a("s_cbranch_scc0 L_A_d2")
    a(f"s_cmp_lt_u32 s{S_C}, 8"); a("s_cbranch_scc1 L_A_d2")
    producer_init(a)
    a(f"s_mov_b32 s{S_PINIT}, 1")
    a.label("L_A_d2")
    a("s_waitcnt lgkmcnt(0)"); a("s_barrier")
    a(f"s_cmp_lt_u32 s{S_C}, 8"); a("s_cbranch_scc0 L_A_fin")
    a(f"v_lshlrev_b32 v{T}, 2, v{V_LANE}")
    a(f"s_lshl_b32 s{S_T0}, s{S_WAVE}, 8"); a(f"s_add_u32 s{S_T0}, s{S_T0}, {L_KVW}"); a(f"v_add_u32 v{T}, s{S_T0}, v{T}")
    for e in range(2):
        for p in range(4): a(f"ds_read_b32 v{T+2+4*e+p}, v{T} offset:{(4*e+p)*2048}")
    a(f"v_lshrrev_b32 v{T+1}, 5, v{V_LANE}"); a(f"v_lshlrev_b32 v{T+1}, 10, v{T+1}"); a(f"v_and_b32 v{T+10}, 31, v{V_LANE}"); a(f"v_lshl_add_u32 v{T+1}, v{T+10}, 2, v{T+1}")
    a(f"v_add_u32 v{T+1}, {L_ZW}, v{T+1}")
    for p in range(4):
        for h in range(2): a(f"ds_read_b32 v{WF+2*p+h}, v{T+1} offset:{p*256+h*128}")
    a(f"v_lshrrev_b32 v{T+11}, 4, v{V_LANE}"); a(f"v_and_b32 v{T+11}, 1, v{T+11}"); a(f"v_mul_u32_u24 v{T+11}, {288*4}, v{T+11}")
    a(f"v_lshrrev_b32 v{T+12}, 5, v{V_LANE}"); a(f"v_lshlrev_b32 v{T+12}, 4, v{T+12}"); a(f"v_and_b32 v{T+13}, 15, v{V_LANE}"); a(f"v_add_u32 v{T+12}, v{T+12}, v{T+13}")
    a(f"v_lshl_add_u32 v{T+11}, v{T+12}, 2, v{T+11}")
    a(f"s_lshl_b32 s{S_T0}, s{S_R}, 5"); a(f"s_lshl_b32 s{S_T1}, s{S_C}, 2"); a(f"s_add_u32 s{S_T0}, s{S_T0}, s{S_T1}"); a(f"s_mul_i32 s{S_T0}, s{S_T0}, {288*4}")
    a(f"s_add_u32 s{S_T2}, s{S_T0}, {WS_KVP}")
    a(f"s_lshl_b32 s{S_T1}, s{S_WAVE}, 7"); a(f"s_add_u32 s{S_T0}, s{S_T2}, s{S_T1}"); a(f"s_add_u32 s{S_T1}, s{S_T0}, {2*288*4}")
    a("s_waitcnt lgkmcnt(0)")
    for e in range(2):
        b = T+2+4*e
        a(f"v_add_f32 v{b}, v{b}, v{b+1}"); a(f"v_add_f32 v{b+2}, v{b+2}, v{b+3}"); a(f"v_add_f32 v{b}, v{b}, v{b+2}")
        a(f"buffer_store_dword v{b}, v{T+11}, {WS}, s{S_T0 if e == 0 else S_T1} offen sc1")
    for q in (0, 2, 4, 6): a(f"v_add_f32 v{WF+q}, v{WF+q}, v{WF+q+1}")
    a(f"v_add_f32 v{WF}, v{WF}, v{WF+2}"); a(f"v_add_f32 v{WF+4}, v{WF+4}, v{WF+6}"); a(f"v_add_f32 v{WF}, v{WF}, v{WF+4}")
    a(f"v_lshrrev_b32 v{T+11}, 4, v{V_LANE}"); a(f"v_mul_u32_u24 v{T+11}, {288*4}, v{T+11}")
    a(f"v_lshrrev_b32 v{T+12}, 2, v{T+13}"); a(f"v_and_b32 v{T+12}, 1, v{T+12}"); a(f"v_lshlrev_b32 v{T+12}, 3, v{T+12}")
    a(f"v_and_b32 v{T+14}, 3, v{T+13}"); a(f"v_add_u32 v{T+12}, v{T+12}, v{T+14}"); a(f"v_lshrrev_b32 v{T+14}, 3, v{T+13}"); a(f"v_lshl_add_u32 v{T+12}, v{T+14}, 2, v{T+12}")
    a(f"v_lshl_add_u32 v{T+11}, v{T+12}, 2, v{T+11}")
    a(f"s_add_u32 s{S_T2}, s{S_T2}, 1024"); a(f"s_cmp_lg_u32 s{S_WAVE}, 0"); a(f"s_cselect_b32 s{S_T2}, {OOB}, s{S_T2}")
    a(f"buffer_store_dword v{WF}, v{T+11}, {WS}, s{S_T2} offen sc1")
    a.label("L_A_fin")


B_R = 8
B_D = 4
ZF = 128
WB = 160
PQF = 224
V_BW0 = 40; V_BW1 = 41; V_SPE = 42; V_SPO = 43; V_BA0 = 44; V_BA1 = 45; V_CD = 46
L_RED = 19 * SLOT
WO1_K = 11
WO1_Q = WO1_K * 2048
S_WOC = 53; S_WOM = 54; S_UOFF = 55; S_XO = 56; S_W1M = 58; S_W1O = 59
S_CB32 = 52; S_TM = 50; S_Q = 51

def srd_from(a, dst, ptr, nbytes):
    a(f"s_mov_b32 s{dst}, s{ptr}"); a(f"s_and_b32 s{dst+1}, s{ptr+1}, 0xffff"); a(f"s_mov_b32 s{dst+2}, {nbytes}"); a(f"s_mov_b32 s{dst+3}, 0x20000")

def flag_store(a, base, wave=0):
    a(f"s_lshr_b32 s{S_T0}, s{S_WG}, 2"); a(f"s_lshl_b32 s{S_T0}, s{S_T0}, 7"); a(f"s_and_b32 s{S_T1}, s{S_WG}, 3"); a(f"s_lshl_b32 s{S_T1}, s{S_T1}, 2")
    a(f"s_add_u32 s{S_T0}, s{S_T0}, s{S_T1}"); a(f"s_add_u32 s{S_T0}, s{S_T0}, {base}")
    a(f"s_cmp_lg_u32 s{S_WAVE}, {wave}"); a(f"s_cselect_b32 s{S_T0}, {OOB}, s{S_T0}")
    a(f"v_mov_b32 v{V_M1}, s{S_TAG}"); a(f"v_mov_b32 v{V_M2}, 0")
    a(f"s_mov_b64 s[{S_SAVE}:{S_SAVE+1}], exec"); a("s_mov_b64 exec, 1")
    a(f"buffer_store_dword v{V_M1}, v{V_M2}, {WS}, s{S_T0} offen sc1")
    a(f"s_mov_b64 exec, s[{S_SAVE}:{S_SAVE+1}]")

V_SP = 200
SRD_Z = 8
def sp_dma_slab(a, slot_static=None):
    if slot_static is None:
        for j in range(8):
            if j == 0: a(f"s_mov_b32 m0, s{S_PSL}")
            else: a(f"s_add_u32 m0, s{S_PSL}, {j*1024}")
            a("s_nop 0") if j == 0 else None
            a(f"buffer_load_dwordx4 v{V_SP+j}, s[{SRD_T}:{SRD_T+3}], s{S_PSIG} offen lds")
        a(f"s_add_u32 s{S_PSL}, s{S_PSL}, {SLOT}"); a(f"s_and_b32 s{S_PSL}, s{S_PSL}, {B_R*SLOT-1}")
    a(f"s_add_u32 s{S_PSIG}, s{S_PSIG}, 128"); a(f"s_and_b32 s{S_PSIG}, s{S_PSIG}, 0xfff")

def producer_init(a):
    T = V_M1; L = V_LANE
    a(f"s_and_b32 s{S_RHO}, s{S_BI}, 7"); a(f"s_lshl_b32 s{S_RHO}, s{S_RHO}, 2"); a(f"s_and_b32 s{S_T0}, s{S_BJ}, 3"); a(f"s_add_u32 s{S_RHO}, s{S_RHO}, s{S_T0}")
    a(f"s_lshl_b32 s{S_T0}, s{S_BI}, 18")
    a(f"s_add_u32 s{SRD_T}, s{P_WSP}, s{S_T0}"); a(f"s_addc_u32 s{SRD_T+1}, s{P_WSP+1}, 0"); a(f"s_and_b32 s{SRD_T+1}, s{SRD_T+1}, 0xffff")
    a(f"s_mov_b32 s{SRD_T+2}, {0 if 'xsp' in OPT else 64*4096}"); a(f"s_mov_b32 s{SRD_T+3}, 0x20000")
    a(f"v_lshrrev_b32 v{T}, 3, v{L}"); a(f"v_and_b32 v{T+1}, 7, v{L}"); a(f"v_lshrrev_b32 v{V_SP+1}, 1, v{T}")
    a(f"v_xor_b32 v{T+1}, v{T+1}, v{V_SP+1}"); a(f"v_lshlrev_b32 v{T+1}, 4, v{T+1}"); a(f"v_lshl_add_u32 v{V_SP}, v{T}, 12, v{T+1}")
    for j in range(1, 8):
        a(f"v_add_u32 v{V_SP+j}, {j*8*4096}, v{V_SP}")
        if j & 1: a(f"v_xor_b32 v{V_SP+j}, 64, v{V_SP+j}")
    a(f"s_lshl_b32 s{S_PSIG}, s{S_RHO}, 7"); a(f"s_mov_b32 s{S_PSL}, 0")
    for k in range(B_R-1): sp_dma_slab(a)

def z_load(a, slotidx):
    b = ZF + 8*slotidx
    a(f"buffer_load_dwordx4 v[{b}:{b+3}], v{V_L16}, s[{SRD_Z}:{SRD_Z+3}], s{S_ZNXT} offen sc1")
    a(f"buffer_load_dwordx4 v[{b+4}:{b+7}], v{V_L16}, s[{SRD_Z}:{SRD_Z+3}], s{S_ZNXT} offen offset:1024 sc1")
    a(f"s_add_u32 s{S_ZNXT}, s{S_ZNXT}, 2048"); a(f"s_and_b32 s{S_ZNXT}, s{S_ZNXT}, 0xffff")

def cd_voffset(a):
    T = V_M1; L = V_LANE
    a(f"v_lshrrev_b32 v{T}, 3, v{L}"); a(f"v_and_b32 v{T+1}, 7, v{L}"); a(f"v_lshrrev_b32 v{V_CD}, 1, v{T}"); a(f"v_and_b32 v{V_CD}, 1, v{V_CD}"); a(f"v_lshlrev_b32 v{V_CD}, 2, v{V_CD}")
    a(f"v_xor_b32 v{T+1}, v{T+1}, v{V_CD}"); a(f"v_lshlrev_b32 v{T+1}, 4, v{T+1}"); a(f"v_lshl_add_u32 v{V_CD}, v{T}, 10, v{T+1}")

def pq_loads(a, k0, n):
    a(f"s_lshl_b32 s{S_T0}, s{S_CB32}, 5"); a(f"s_lshl_b32 s{S_T1}, s{S_Q}, 3"); a(f"s_add_u32 s{S_T0}, s{S_T0}, s{S_T1}"); a(f"s_add_u32 s{S_T0}, s{S_T0}, {k0}")
    a(f"s_lshl_b32 s{S_T0}, s{S_T0}, 10"); a(f"s_add_u32 s{S_T0}, s{S_T0}, {WS_PQ}")
    for k in range(n):
        a(f"buffer_load_dwordx4 v[{PQF+4*(k0+k)}:{PQF+4*(k0+k)+3}], v{V_L16}, {WS}, s{S_T0} offen offset:{k*1024} sc1")

KVF = 128
def kv_loads(a):
    a(f"s_lshl_b32 s{S_LA}, s{S_Q}, 13"); a(f"s_add_u32 s{S_LA}, s{S_LA}, {WS_KVT}"); a(f"s_add_u32 s{S_LB}, s{S_LA}, 4096")
    for k in range(8):
        so = S_LA if k < 4 else S_LB
        a(f"buffer_load_dwordx4 v[{KVF+4*k}:{KVF+4*k+3}], v{V_L16}, {WS}, s{so} offen offset:{(k&3)*1024} sc1")

def phaseB(a):
    T = TMP; L = V_LANE
    stamp(a, 7)
    a(f"s_lshr_b32 s{S_TM}, s{S_WAVE}, 2"); a(f"s_and_b32 s{S_Q}, s{S_WAVE}, 3")
    a(f"s_lshl_b32 s{S_CB32}, s{S_BI}, 1"); a(f"s_add_u32 s{S_CB32}, s{S_CB32}, s{S_TM}")
    a(f"s_mov_b32 s{S_TAU}, 0")
    a(f"s_cmp_eq_u32 s{S_WAVE}, 7"); a("s_cbranch_scc1 L_B_prod")
    issue_clears_late(a)
    a(f"s_and_b32 s{S_RHO}, s{S_BI}, 7"); a(f"s_lshl_b32 s{S_RHO}, s{S_RHO}, 2"); a(f"s_and_b32 s{S_T0}, s{S_BJ}, 3"); a(f"s_add_u32 s{S_RHO}, s{S_RHO}, s{S_T0}")
    a(f"s_mul_i32 s{S_ZB}, s{S_BJ}, 7"); a(f"s_add_u32 s{S_ZB}, s{S_ZB}, s{S_WAVE}"); a(f"s_lshl_b32 s{S_ZB}, s{S_ZB}, 16"); a(f"s_add_u32 s{S_ZB}, s{S_ZB}, {WS_Z2N}")
    a(f"s_add_u32 s{SRD_Z}, s{SRD_WS}, s{S_ZB}"); a(f"s_addc_u32 s{SRD_Z+1}, s{SRD_WS+1}, 0"); a(f"s_mov_b32 s{SRD_Z+2}, {0 if 'xz' in OPT else 65536}"); a(f"s_mov_b32 s{SRD_Z+3}, 0x20000")
    a(f"s_lshl_b32 s{S_ZNXT}, s{S_RHO}, 11")
    for d in range(B_D): z_load(a, d)
    stubs = []
    a(f"v_and_b32 v{T}, 15, v{L}"); a(f"v_lshrrev_b32 v{T+1}, 4, v{L}"); a(f"v_lshrrev_b32 v{T+2}, 1, v{T}")
    a(f"v_xor_b32 v{T+1}, v{T+1}, v{T+2}"); a(f"v_lshlrev_b32 v{T+1}, 4, v{T+1}"); a(f"v_lshl_add_u32 v{V_BW0}, v{T}, 7, v{T+1}"); a(f"v_xor_b32 v{V_BW1}, 64, v{V_BW0}")
    for r in range(16): a(f"v_mov_b32 v{ACC+r}, 0")
    def wreads(st, slot):
        for kk in range(2):
            for tt in range(4):
                w = WB + 32*st + 16*kk + 4*tt
                if 'xds' not in OPT: a(f"ds_read_b128 v[{w}:{w+3}], v{V_BW0 if kk == 0 else V_BW1} offset:{slot*SLOT + tt*2048}")
    def checkz(b):
        a(f"v_max3_u32 v{T}, v{b}, v{b+1}, v{b+2}"); a(f"v_max3_u32 v{T+1}, v{b+3}, v{b+4}, v{b+5}"); a(f"v_max3_u32 v{T}, v{T}, v{b+6}, v{b+7}"); a(f"v_max_u32 v{T}, v{T}, v{T+1}")
        a(f"v_cmp_eq_u32 vcc, -1, v{T}")
    if 'bst' in OPT: stamp(a, 50)
    a("s_barrier")
    if 'bst' in OPT: stamp(a, 52)
    wreads(0, 0)
    Z1R = 96
    ZB1 = 64
    def extra_loads(k):
        if k == 0:
            a(f"s_mul_i32 s{S_T0}, s{S_BI}, 112"); a(f"s_mul_i32 s{S_T1}, s{S_BJ}, 7"); a(f"s_add_u32 s{S_T0}, s{S_T0}, s{S_T1}"); a(f"s_add_u32 s{S_T0}, s{S_T0}, s{S_WAVE}")
            a(f"s_lshl_b32 s{S_T0}, s{S_T0}, 10"); a(f"s_add_u32 s{S_UOFF}, s{S_T0}, {WS_U}"); a(f"s_add_u32 s{S_T0}, s{S_T0}, {WS_Z1}"); a(f"s_add_u32 s{S_T1}, s{S_T0}, {56*1024}")
            a(f"buffer_load_dwordx4 v[{ZB1}:{ZB1+3}], v{V_L16}, {WS}, s{S_T0} offen sc1"); a(f"buffer_load_dwordx4 v[{ZB1+4}:{ZB1+7}], v{V_L16}, {WS}, s{S_T1} offen sc1")
            srd_from(a, SRD_T, P_BSP, 4096)
            a(f"v_and_b32 v{T+2}, 15, v{L}"); a(f"v_lshlrev_b32 v{T+2}, 1, v{T+2}"); a(f"s_lshl_b32 s{S_T0}, s{S_BI}, 7")
            for tt in range(4): a(f"buffer_load_ushort v{ZB1+8+tt}, v{T+2}, s[{SRD_T}:{SRD_T+3}], s{S_T0} offen offset:{32*tt}")
        elif k == 1: pq_loads(a, 0, 4)
        elif k == 2: pq_loads(a, 4, 4)
    variants = ["L"]
    for var in variants:
        a.label(f"L_B_cl{var}")
        for u in range(8):
            lr, lk = f"L_B_rt{var}{u}", f"L_B_ok{var}{u}"
            b = ZF + 8*(u & 3); st = u & 1
            a("s_waitcnt lgkmcnt(0)")
            if u % 2 == 0: a("s_barrier")
            if 'bst' in OPT and u == 0: stamp_reg(a, S_TAU, 16)
            wreads(st ^ 1, (u + 1) & 7)
            if u >= 5:
                lw = a.newlabel("L_B_w"); lw2 = a.newlabel("L_B_w")
                a(f"s_cmp_eq_u32 s{S_TAU}, 24"); a(f"s_cbranch_scc1 {lw}")
                a(f"s_waitcnt vmcnt({2*(B_D-1)})"); a(f"s_branch {lw2}")
                a.label(lw)
                n = 2*(7-u) + sum([6, 4, 4][:u-4])
                a(f"s_waitcnt vmcnt({n})")
                a.label(lw2)
            else:
                a(f"s_waitcnt vmcnt({2*(B_D-1)})")
            checkz(b)
            a(f"s_cbranch_vccnz {lr}")
            a.label(lk)
            if 'bst' in OPT and u == 0: stamp_reg(a, S_TAU, 53)
            for kk in range(2):
                for tt in range(4):
                    w = WB + 32*st + 16*kk + 4*tt
                    if 'xmfma' not in OPT: a(f"v_mfma_f32_16x16x32_bf16 v[{ACC+4*tt}:{ACC+4*tt+3}], v[{b+4*kk}:{b+4*kk+3}], v[{w}:{w+3}], v[{ACC+4*tt}:{ACC+4*tt+3}]")
            if u >= 4:
                lx = a.newlabel("L_B_x"); lx2 = a.newlabel("L_B_x")
                a(f"s_cmp_eq_u32 s{S_TAU}, 24"); a(f"s_cbranch_scc1 {lx}")
                z_load(a, u & 3)
                a.label(lx2)
                stubs.append((lx, lx2, u-4))
            else:
                z_load(a, u & 3)
        a(f"s_add_u32 s{S_TAU}, s{S_TAU}, 8"); a(f"s_cmp_lt_u32 s{S_TAU}, 32"); a(f"s_cbranch_scc1 L_B_cl{var}")
        a("s_branch L_B_epi")
    for lx, lx2, k in stubs:
        a.label(lx); extra_loads(k); a(f"s_branch {lx2}")
    for var in variants:
      for u in range(8):
        lr, lk = f"L_B_rt{var}{u}", f"L_B_ok{var}{u}"
        b = ZF + 8*(u & 3)
        a.label(lr)
        a(f"s_mov_b32 s{S_SPIN}, 0")
        a(f"s_add_u32 s{S_T0}, s{S_TAU}, {u}"); a(f"s_add_u32 s{S_T0}, s{S_T0}, s{S_RHO}"); a(f"s_and_b32 s{S_T0}, s{S_T0}, 31"); a(f"s_lshl_b32 s{S_T0}, s{S_T0}, 11"); a(f"s_add_u32 s{S_T0}, s{S_T0}, s{S_ZB}")
        a.label(lr + "_l")
        a(f"buffer_load_dwordx4 v[{b}:{b+3}], v{V_L16}, {WS}, s{S_T0} offen sc1")
        a(f"buffer_load_dwordx4 v[{b+4}:{b+7}], v{V_L16}, {WS}, s{S_T0} offen offset:1024 sc1")
        a("s_waitcnt vmcnt(0)")
        checkz(b)
        spin_check(a, lk)
        a(f"s_cbranch_vccnz {lr}_l")
        a(f"s_branch {lk}")
    a.label("L_B_epi")
    a("s_waitcnt lgkmcnt(0)")
    a("s_barrier")
    stamp(a, 9)
    Z = 64
    kv_loads(a)
    a("s_waitcnt vmcnt(16)")
    for tt in range(4):
        a(f"v_lshlrev_b32 v{Z+8+tt}, 16, v{Z+8+tt}")
    for tt in range(4):
        zr = Z + 4*(tt >> 1) + 2*(tt & 1)
        for i in range(4): a(f"v_add_f32 v{ACC+4*tt+i}, v{ACC+4*tt+i}, v{Z+8+tt}")
        a(f"v_lshlrev_b32 v{T+6}, 16, v{zr}"); a(f"v_and_b32 v{T+7}, 0xffff0000, v{zr}"); a(f"v_lshlrev_b32 v{T+8}, 16, v{zr+1}"); a(f"v_and_b32 v{T+9}, 0xffff0000, v{zr+1}")
        for i in range(4): a(f"v_mul_f32 v{ACC+4*tt+i}, v{ACC+4*tt+i}, v{T+6+i}")
    pack(a, ACC, 76)
    for m in range(2):
        b = 76 + 4*m
        a(f"v_permlane16_swap_b32 v{b}, v{b+2}"); a(f"v_permlane16_swap_b32 v{b+1}, v{b+3}")
    a(f"s_add_u32 s{S_T1}, s{S_UOFF}, {56*1024}")
    a(f"buffer_store_dwordx4 v[76:79], v{V_L16}, {WS}, s{S_UOFF} offen sc1"); a(f"buffer_store_dwordx4 v[80:83], v{V_L16}, {WS}, s{S_T1} offen sc1")
    a("s_branch L_B_end")
    a.label("L_B_prod")
    a(f"s_cmp_eq_u32 s{S_PINIT}, 1"); a("s_cbranch_scc1 L_B_pi")
    producer_init(a)
    a.label("L_B_pi")
    cd_voffset(a)
    srd_from(a, SRD_W, P_WOUT, 896*512*2)
    a(f"s_lshl_b32 s{S_WOC}, s{S_BJ}, 7")
    a(f"s_mov_b32 s{S_WOM}, {8*SLOT}")
    def wout4():
        for q in range(4):
            if q == 0: a(f"s_mov_b32 m0, s{S_WOM}"); a(f"s_mov_b32 s{S_T0}, s{S_WOC}")
            else: a(f"s_add_u32 m0, s{S_WOM}, {q*WO1_Q}"); a(f"s_add_u32 s{S_T0}, s{S_WOC}, {q*224*1024}")
            a(f"buffer_load_dwordx4 v{V_CD}, s[{SRD_W}:{SRD_W+3}], s{S_T0} offen lds")
        a(f"s_add_u32 s{S_WOC}, s{S_WOC}, 8192"); a(f"s_add_u32 s{S_WOM}, s{S_WOM}, 1024")
    def wo_slab():
        for k in range(8):
            if k == 0: a(f"s_mov_b32 m0, s{S_WOM}"); a("s_nop 0")
            else: a(f"s_add_u32 m0, s{S_WOM}, {k*1024}"); a(f"s_add_u32 s{S_WOC}, s{S_WOC}, 8192")
            a(f"buffer_load_dwordx4 v{V_CD}, s[{SRD_W}:{SRD_W+3}], s{S_WOC} offen lds")
        a(f"s_add_u32 s{S_WOC}, s{S_WOC}, 8192"); a(f"s_add_u32 s{S_WOM}, s{S_WOM}, {SLOT}")
    def sync():
        a("s_waitcnt vmcnt(32)"); a("s_barrier")
    if 'bst' in OPT: stamp(a, 50)
    a(f"s_waitcnt vmcnt({8*(B_R-2)})")
    if 'bst' in OPT: stamp(a, 51)
    a("s_barrier")
    if 'bst' in OPT: stamp(a, 52)
    sync(); sp_dma_slab(a); sp_dma_slab(a)
    sync(); sp_dma_slab(a); sp_dma_slab(a); flag_store(a, WS_FDONE, 7)
    a(f"s_mov_b32 s{S_TAU}, 4")
    a.label("L_B_pl")
    sync(); sp_dma_slab(a); sp_dma_slab(a)
    a(f"s_cmp_eq_u32 s{S_TAU}, 8"); a("s_cbranch_scc1 L_PJ1")
    a(f"s_cmp_eq_u32 s{S_TAU}, 16"); a("s_cbranch_scc1 L_PJ2")
    a.label("L_PJe")
    a(f"s_add_u32 s{S_TAU}, s{S_TAU}, 2"); a(f"s_cmp_lt_u32 s{S_TAU}, 24"); a("s_cbranch_scc1 L_B_pl")
    srd_from(a, SRD_W, P_WO, 512*512*2)
    a(f"s_lshl_b32 s{S_WOC}, s{S_BJ}, 7"); a(f"s_mov_b32 s{S_WOM}, 0")
    sync(); sp_dma_slab(a); wo_slab()
    a("s_waitcnt vmcnt(24)"); a("s_barrier"); wo_slab(); wo_slab(); kv_reduce_job(a)
    a("s_waitcnt vmcnt(24)"); a("s_barrier"); wo_slab(); wo_slab()
    a("s_waitcnt vmcnt(32)"); a("s_barrier"); wo_slab(); wo_slab()
    a("s_barrier"); wo_slab()
    pq_loads(a, 0, 4); pq_loads(a, 4, 4); kv_loads(a)
    a("s_branch L_B_end")
    producer_rare_jobs(a)
    a.label("L_B_end")

RP = 128
def producer_rare_jobs(a):
    T = TMP; L = V_LANE
    a.label("L_PJ1")
    issue_flag_loads(a, WS_FDONE)
    a("s_branch L_PJe")
    a.label("L_PJ2")
    check_flags(a, WS_FDONE, "d")
    a(f"s_cmp_ge_u32 s{S_WG}, 32"); a("s_cbranch_scc1 L_PJe")
    a(f"s_mul_i32 s{S_T0}, s{S_WG}, 1152"); a(f"s_add_u32 s{S_T0}, s{S_T0}, {WS_KVP}")
    for r in range(16):
        a(f"buffer_load_dwordx4 v[{RP+4*r}:{RP+4*r+3}], v{V_L16}, {WS}, s{S_T0} offen sc1")
        if r < 15: a(f"s_add_u32 s{S_T0}, s{S_T0}, {32*1152}")
    a(f"v_lshrrev_b32 v{T}, 2, v{L}"); a(f"v_mul_u32_u24 v{T}, {32*1152}, v{T}"); a(f"v_and_b32 v{T+1}, 3, v{L}"); a(f"v_lshl_add_u32 v{T}, v{T+1}, 4, v{T}")
    a(f"s_mul_i32 s{S_T0}, s{S_WG}, 1152"); a(f"s_add_u32 s{S_T0}, s{S_T0}, {WS_KVP+1024}")
    a(f"buffer_load_dwordx4 v[{RP+64}:{RP+67}], v{T}, {WS}, s{S_T0} offen sc1")
    a("s_branch L_PJe")

def kv_reduce_job(a):
    T = TMP; L = V_LANE
    a(f"s_cmp_ge_u32 s{S_WG}, 32"); a(f"s_cbranch_scc1 L_KVe")
    for r in range(1, 16):
        for d in range(4): a(f"v_add_f32 v{RP+d}, v{RP+d}, v{RP+4*r+d}")
    Zr = RP + 64
    for d in range(4):
        a(f"v_add_f32_dpp v{Zr+d}, v{Zr+d}, v{Zr+d} row_ror:4 row_mask:0xf bank_mask:0xf")
    for d in range(4):
        a(f"v_add_f32_dpp v{Zr+d}, v{Zr+d}, v{Zr+d} row_ror:8 row_mask:0xf bank_mask:0xf")
    for d in range(4):
        a(f"v_mov_b32 v{T+d}, v{Zr+d}")
    for d in range(4):
        a(f"v_permlane16_swap_b32 v{Zr+d}, v{T+d}")
    for d in range(4):
        a(f"v_add_f32 v{Zr+d}, v{Zr+d}, v{T+d}")
    for d in range(4):
        a(f"v_mov_b32 v{T+d}, v{Zr+d}")
    for d in range(4):
        a(f"v_permlane32_swap_b32 v{Zr+d}, v{T+d}")
    for d in range(4):
        a(f"v_add_f32 v{Zr+d}, v{Zr+d}, v{T+d}")
    a(f"v_add_u32 v{T+4}, {L_RED}, v{V_L16}")
    a(f"ds_write_b128 v{T+4}, v[{RP}:{RP+3}]")
    a(f"v_and_b32 v{T+5}, 3, v{L}"); a(f"v_lshlrev_b32 v{T+5}, 4, v{T+5}"); a(f"v_add_u32 v{T+5}, {L_RED+1024}, v{T+5}")
    a(f"ds_write_b128 v{T+5}, v[{Zr}:{Zr+3}]")
    a(f"v_and_b32 v{T+6}, 15, v{L}"); a(f"v_lshrrev_b32 v{T+7}, 5, v{L}"); a(f"v_lshl_add_u32 v{T+6}, v{T+7}, 4, v{T+6}"); a(f"v_lshlrev_b32 v{T+6}, 2, v{T+6}"); a(f"v_add_u32 v{T+6}, {L_RED}, v{T+6}")
    a(f"v_lshlrev_b32 v{T+7}, 5, v{T+7}"); a(f"v_add_u32 v{T+7}, {L_RED+1024}, v{T+7}")
    a("s_waitcnt lgkmcnt(0)")
    for jj in range(8): a(f"ds_read_b32 v{RP+8+jj}, v{T+6} offset:{128*jj}")
    a(f"ds_read_b128 v[{RP+16}:{RP+19}], v{T+7}"); a(f"ds_read_b128 v[{RP+20}:{RP+23}], v{T+7} offset:16")
    a(f"v_and_b32 v{T+8}, 16, v{L}"); a(f"v_cmp_eq_u32 vcc, 0, v{T+8}")
    a("s_waitcnt lgkmcnt(0)")
    for jj in range(8): a(f"v_cndmask_b32 v{RP+8+jj}, v{RP+16+jj}, v{RP+8+jj}, vcc")
    for q in range(4): a(f"v_cvt_pk_bf16_f32 v{RP+24+q}, v{RP+8+2*q}, v{RP+9+2*q}")
    a(f"s_lshl_b32 s{S_T0}, s{S_WG}, 10"); a(f"s_add_u32 s{S_T0}, s{S_T0}, {WS_KVT}")
    a(f"buffer_store_dwordx4 v[{RP+24}:{RP+27}], v{V_L16}, {WS}, s{S_T0} offen sc1")
    a.label("L_KVe")


UF = 160; AS = 48; AT = 80; CO = 216; CW = 16
CDA = 96; CDB = 112
V_CWA = 41; V_CWO = 42; V_CX = 43

def sentinel_check(a, regs, tmp):
    r = list(regs)
    a(f"v_max3_u32 v{tmp}, v{r[0]}, v{r[1]}, v{r[2]}"); r = r[3:]
    while len(r) >= 2:
        a(f"v_max3_u32 v{tmp}, v{tmp}, v{r[0]}, v{r[1]}"); r = r[2:]
    if r: a(f"v_max_u32 v{tmp}, v{tmp}, v{r[0]}")
    a(f"v_cmp_eq_u32 vcc, -1, v{tmp}")

def phaseC(a):
    L = V_LANE
    T = 32
    cd_voffset(a)
    srd_from(a, SRD_T, P_WOUT, 896*512*2)
    a(f"v_lshrrev_b32 v{T}, 5, v{L}"); a(f"v_lshlrev_b32 v{T}, 9, v{T}"); a(f"v_sub_u32 v{V_CWO}, v{V_WA}, v{T}")
    a(f"s_lshl_b32 s{S_T0}, s{S_Q}, 14"); a(f"v_add_u32 v{V_CWO}, s{S_T0}, v{V_CWO}")
    a(f"s_mul_i32 s{S_T0}, s{S_Q}, {WO1_Q}"); a(f"s_add_u32 s{S_T0}, s{S_T0}, {8*SLOT}"); a(f"v_add_u32 v{V_CWA}, s{S_T0}, v{V_WA}")
    a(f"s_mul_i32 s{S_ZB}, s{S_CB32}, 56"); a(f"s_mul_i32 s{S_T0}, s{S_Q}, 14"); a(f"s_add_u32 s{S_ZB}, s{S_ZB}, s{S_T0}"); a(f"s_lshl_b32 s{S_ZB}, s{S_ZB}, 10"); a(f"s_add_u32 s{S_ZB}, s{S_ZB}, {WS_U}")
    a(f"v_xor_b32 v{T+4}, 64, v{V_CWO}")
    a(f"s_lshr_b32 s{S_T2}, s{S_WAVE}, 1"); a(f"s_and_b32 s{S_T3}, s{S_WAVE}, 1")
    a(f"s_mul_i32 s{S_T0}, s{S_T2}, 224"); a(f"s_mul_i32 s{S_T1}, s{S_T3}, 88"); a(f"s_add_u32 s{S_T0}, s{S_T0}, s{S_T1}"); a(f"s_lshl_b32 s{S_T0}, s{S_T0}, 10")
    a(f"s_lshl_b32 s{S_T1}, s{S_BJ}, 7"); a(f"s_add_u32 s{S_T0}, s{S_T0}, s{S_T1}")
    a(f"s_mul_i32 s{S_T2}, s{S_T2}, {WO1_Q}"); a(f"s_mul_i32 s{S_T3}, s{S_T3}, {11*1024}"); a(f"s_add_u32 s{S_T2}, s{S_T2}, s{S_T3}"); a(f"s_add_u32 s{S_T2}, s{S_T2}, {8*SLOT}")
    def wout1(k0, k1):
        for k in range(k0, k1):
            a(f"s_add_u32 m0, s{S_W1M}, {k*1024}"); a(f"s_add_u32 s{S_T0}, s{S_W1O}, {k*8192}")
            a(f"buffer_load_dwordx4 v{V_CD}, s[{SRD_T}:{SRD_T+3}], s{S_T0} offen lds")
    a(f"s_mov_b32 s{S_W1M}, s{S_T2}"); a(f"s_mov_b32 s{S_W1O}, s{S_T0}")
    a(f"s_cmp_eq_u32 s{S_WAVE}, 7"); a("s_cbranch_scc1 L_C_w7")
    a("s_waitcnt vmcnt(2)"); a("s_branch L_C_w0")
    a.label("L_C_w7")
    a("s_waitcnt vmcnt(0)")
    a.label("L_C_w0")
    a("s_barrier")
    stamp(a, 11)
    a(f"s_mov_b32 s{S_SPIN}, 0")
    a.label("L_C_kvchk")
    sentinel_check(a, range(KVF, KVF+32), T)
    a("s_cbranch_vccz L_C_kvok")
    spin_check(a, "L_C_kvok")
    kv_loads(a)
    a("s_waitcnt vmcnt(0)")
    a("s_branch L_C_kvchk")
    a.label("L_C_kvok")
    def u_loads():
        for k in range(14):
            if k % 4 == 0: a(f"s_add_u32 s{S_T0}, s{S_ZB}, {k*1024}")
            a(f"buffer_load_dwordx4 v[{UF+4*k}:{UF+4*k+3}], v{V_L16}, {WS}, s{S_T0} offen offset:{(k&3)*1024} sc1")
    def att(k):
        cd = CDA if k % 2 == 0 else CDB
        a(f"v_mfma_f32_32x32x16_bf16 v[{cd}:{cd+15}], v[{KVF+4*k}:{KVF+4*k+3}], v[{PQF+4*k}:{PQF+4*k+3}], 0")
    def wo_rd(k):
        for ch in range(2):
            base = V_CWO if ch == 0 else T+4
            w = CW + 8*(k & 1) + 4*ch
            a(f"ds_read_b64_tr_b16 v[{w}:{w+1}], v{base} offset:{k*2048}"); a(f"ds_read_b64_tr_b16 v[{w+2}:{w+3}], v{base} offset:{k*2048+1024}")
    att(0); wo_rd(0)
    for k in range(8):
        cd = CDA if k % 2 == 0 else CDB
        co = CO + 4*(k & 1)
        if k < 7: att(k+1); wo_rd(k+1)
        if k < 5: wout1(2*k, 2*k+2)
        if k == 5: wout1(10, 11); u_loads()
        a(f"v_add_f32 v{T}, s{S_EPS6}, v{cd+8}"); a(f"v_rcp_f32 v{T}, v{T}")
        for r in range(8): a(f"v_mul_f32 v{cd+r}, v{cd+r}, v{T}")
        for q in range(4): a(f"v_cvt_pk_bf16_f32 v{co+q}, v{cd+2*q}, v{cd+2*q+1}")
        a(f"s_waitcnt lgkmcnt({4 if k < 7 else 0})")
        for ch in range(2):
            w = CW + 8*(k & 1) + 4*ch
            c = "0" if k == 0 else f"v[{AS+16*ch}:{AS+16*ch+15}]"
            a(f"v_mfma_f32_32x32x16_bf16 v[{AS+16*ch}:{AS+16*ch+15}], v[{w}:{w+3}], v[{co}:{co+3}], {c}")
    a("s_waitcnt vmcnt(14)")
    a("s_barrier")
    a(f"s_lshr_b32 s{S_T2}, s{S_WAVE}, 1"); a(f"s_and_b32 s{S_T3}, s{S_WAVE}, 1")
    a(f"s_mul_i32 s{S_T0}, s{S_T2}, 224"); a(f"s_mul_i32 s{S_T1}, s{S_T3}, 24"); a(f"s_add_u32 s{S_T0}, s{S_T0}, s{S_T1}"); a(f"s_add_u32 s{S_T0}, s{S_T0}, 176")
    a(f"s_lshl_b32 s{S_T0}, s{S_T0}, 10"); a(f"s_lshl_b32 s{S_T1}, s{S_BJ}, 7"); a(f"s_add_u32 s{S_T0}, s{S_T0}, s{S_T1}")
    a(f"s_mul_i32 s{S_T2}, s{S_T2}, 6144"); a(f"s_mul_i32 s{S_T3}, s{S_T3}, 3072"); a(f"s_add_u32 s{S_T2}, s{S_T2}, s{S_T3}")
    for k in range(3):
        a(f"s_add_u32 m0, s{S_T2}, {k*1024}")
        if k: a(f"s_add_u32 s{S_T0}, s{S_T0}, 8192")
        else: a("s_nop 0")
        a(f"buffer_load_dwordx4 v{V_CD}, s[{SRD_T}:{SRD_T+3}], s{S_T0} offen lds")
    SX = 32768
    a(f"s_lshl_b32 s{S_T0}, s{S_TM}, 15"); a(f"s_lshl_b32 s{S_T1}, s{S_Q}, 11"); a(f"s_add_u32 s{S_T0}, s{S_T0}, s{S_T1}"); a(f"s_add_u32 s{S_T0}, s{S_T0}, {SX}")
    a(f"s_mul_i32 s{S_T0}, s{S_TM}, {4*3*1024*2 // 2 * 1}") if False else None
    a(f"v_and_b32 v{T+1}, 31, v{L}"); a(f"v_lshlrev_b32 v{T+1}, 10, v{T+1}"); a(f"v_lshrrev_b32 v{T+2}, 5, v{L}"); a(f"v_lshl_add_u32 v{V_CX}, v{T+2}, 3, v{T+1}")
    a(f"s_lshl_b32 s{S_T0}, s{S_CB32}, 15"); a(f"s_lshl_b32 s{S_T1}, s{S_BJ}, 7"); a(f"s_add_u32 s{S_T0}, s{S_T0}, s{S_T1}"); a(f"s_lshl_b32 s{S_T1}, s{S_Q}, 5"); a(f"s_add_u32 s{S_XO}, s{S_T0}, s{S_T1}")
    XR = 220
    a(f"buffer_load_dwordx2 v[{XR}:{XR+1}], v{V_CX}, s[{SRD_X}:{SRD_X+3}], s{S_XO} offen"); a(f"buffer_load_dwordx2 v[{XR+2}:{XR+3}], v{V_CX}, s[{SRD_X}:{SRD_X+3}], s{S_XO} offen offset:16")
    a("s_waitcnt vmcnt(5)")
    a(f"s_mov_b32 s{S_SPIN}, 0")
    a.label("L_C_uchk")
    sentinel_check(a, range(UF, UF+56), T)
    a("s_cbranch_vccz L_C_uok")
    spin_check(a, "L_C_uok")
    u_loads()
    a("s_waitcnt vmcnt(0)")
    a("s_branch L_C_uchk")
    a.label("L_C_uok")
    stamp(a, 12)
    a(f"v_xor_b32 v{T+4}, 64, v{V_CWA}")
    a(f"s_mul_i32 s{S_T0}, s{S_Q}, 6144"); a(f"v_add_u32 v{T+5}, s{S_T0}, v{V_WA}"); a(f"v_xor_b32 v{T+6}, 64, v{T+5}")
    TB = [16, 24, 128, 136]
    def tstep(k):
        if k < WO1_K: b0, b1, off = V_CWA, T+4, k*2048
        else: b0, b1, off = T+5, T+6, (k-WO1_K)*2048
        for ch in range(2):
            base = b0 if ch == 0 else b1
            w = TB[k & 3] + 4*ch
            a(f"ds_read_b64_tr_b16 v[{w}:{w+1}], v{base} offset:{off}"); a(f"ds_read_b64_tr_b16 v[{w+2}:{w+3}], v{base} offset:{off+512}")
    def tmfma(k):
        for ch in range(2):
            w = TB[k & 3] + 4*ch
            c = "0" if k == 0 else f"v[{AT+16*ch}:{AT+16*ch+15}]"
            a(f"v_mfma_f32_32x32x16_bf16 v[{AT+16*ch}:{AT+16*ch+15}], v[{w}:{w+3}], v[{UF+4*k}:{UF+4*k+3}], {c}")
    for k in range(2): tstep(k)
    for k in range(14):
        nx = k + 2
        if nx == WO1_K:
            a("s_waitcnt vmcnt(0)"); a("s_barrier")
        if nx < 14:
            tstep(nx); a("s_waitcnt lgkmcnt(8)")
        else:
            a(f"s_waitcnt lgkmcnt({4*(13-k)})")
        tmfma(k)
    a("s_barrier")
    stamp(a, 13)
    a(f"s_lshl_b32 s{S_T0}, s{S_TM}, 16"); a(f"s_lshl_b32 s{S_T1}, s{S_Q}, 12"); a(f"s_add_u32 s{S_T0}, s{S_T0}, s{S_T1}")
    a(f"v_add_u32 v{T}, s{S_T0}, v{V_L16}")
    FS, FT = 112, 120
    for q in range(4):
        lq, ln = f"L_C_q{q}", f"L_C_q{q+1}"
        a.label(lq)
        if q < 3: a(f"s_cmp_eq_u32 s{S_Q}, {q}"); a(f"s_cbranch_scc0 {ln}")
        for qd in range(4):
            ch, hf = qd >> 1, qd & 1
            srcS = AS + 16*ch + 8*hf; srcT = AT + 16*ch + 8*hf
            if qd == q: continue
            a(f"ds_write_b128 v{T}, v[{srcS}:{srcS+3}] offset:{qd*16384}"); a(f"ds_write_b128 v{T}, v[{srcS+4}:{srcS+7}] offset:{qd*16384+1024}")
            a(f"ds_write_b128 v{T}, v[{srcT}:{srcT+3}] offset:{qd*16384+2048}"); a(f"ds_write_b128 v{T}, v[{srcT+4}:{srcT+7}] offset:{qd*16384+3072}")
        ch, hf = q >> 1, q & 1
        for r in range(8): a(f"v_mov_b32 v{FS+r}, v{AS+16*ch+8*hf+r}"); a(f"v_mov_b32 v{FT+r}, v{AT+16*ch+8*hf+r}")
        a(f"s_lshl_b32 s{S_T0}, s{S_TM}, 16"); a(f"s_add_u32 s{S_T0}, s{S_T0}, {q*16384}"); a(f"v_add_u32 v{T+1}, s{S_T0}, v{V_L16}")
        a("s_waitcnt lgkmcnt(0)")
        a("s_barrier")
        RB = 128
        n = 0
        for qs in range(4):
            if qs == q: continue
            for c4 in range(4): a(f"ds_read_b128 v[{RB+16*n+4*c4}:{RB+16*n+4*c4+3}], v{T+1} offset:{qs*4096+c4*1024}")
            n += 1
        for n in range(3):
            a(f"s_waitcnt lgkmcnt({4*(2-n)})")
            for r in range(8): a(f"v_add_f32 v{FS+r}, v{FS+r}, v{RB+16*n+r}"); a(f"v_add_f32 v{FT+r}, v{FT+r}, v{RB+16*n+8+r}")
        if q < 3: a("s_branch L_C_fin")
    a.label("L_C_fin")
    E_ = 176; RB = 128
    for r in range(8): a(f"v_mul_f32 v{E_+r}, {hexf(-LOG2E)}, v{FT+r}")
    for r in range(8): a(f"v_exp_f32 v{E_+r}, v{E_+r}")
    for r in range(8): a(f"v_add_f32 v{E_+r}, 1.0, v{E_+r}")
    for r in range(8): a(f"v_rcp_f32 v{E_+r}, v{E_+r}")
    for r in range(8): a(f"v_mul_f32 v{E_+r}, v{FT+r}, v{E_+r}")
    for q in range(4):
        a(f"v_lshlrev_b32 v{RB+2*q}, 16, v{XR+q}"); a(f"v_and_b32 v{RB+2*q+1}, 0xffff0000, v{XR+q}")
    for r in range(8): a(f"v_fma_f32 v{RB+r}, v{FS+r}, v{E_+r}, v{RB+r}")
    for q in range(4): a(f"v_cvt_pk_bf16_f32 v{XR+q}, v{RB+2*q}, v{RB+2*q+1}")
    srd_from(a, SRD_W, P_OUT, 2048*512*2)
    a(f"buffer_store_dwordx2 v[{XR}:{XR+1}], v{V_CX}, s[{SRD_W}:{SRD_W+3}], s{S_XO} offen"); a(f"buffer_store_dwordx2 v[{XR+2}:{XR+3}], v{V_CX}, s[{SRD_W}:{SRD_W+3}], s{S_XO} offen offset:16")
    a(f"s_mov_b32 s{S_T1}, {WS_EPOCH}"); a(f"s_or_b32 s{S_T0}, s{S_WG}, s{S_WAVE}"); a(f"s_cmp_eq_u32 s{S_T0}, 0"); a(f"s_cselect_b32 s{S_T0}, s{S_T1}, {OOB}")
    a(f"v_mov_b32 v{V_M1}, s{S_TAG}"); a(f"v_mov_b32 v{V_M2}, 0")
    a("s_mov_b64 exec, 1")
    a(f"buffer_store_dword v{V_M1}, v{V_M2}, {WS}, s{S_T0} offen sc1")
    a("s_mov_b64 exec, -1")

def kernel_footer(K, nv=256, ns=102):
    return f""".p2align 6
.amdhsa_kernel {K}
  .amdhsa_next_free_vgpr {nv}
  .amdhsa_next_free_sgpr {ns}
  .amdhsa_accum_offset {nv}
  .amdhsa_group_segment_fixed_size 0
  .amdhsa_kernarg_size 88
  .amdhsa_user_sgpr_count 2
  .amdhsa_user_sgpr_kernarg_segment_ptr 1
  .amdhsa_system_sgpr_workgroup_id_x 1
.end_amdhsa_kernel
"""

def emit_phaseA(a):
    vm = VM()
    setup_first(a, vm)
    if 'pst' in OPT: stamp(a, 18)
    setup_lane_consts(a)
    if 'pst' in OPT: stamp(a, 19)
    issue_initial(a, vm)
    stamp(a, 1)
    pass1(a, vm)
    stamp(a, 5)
    phaseA_main(a)

def build(dbg=False, upto="A"):
    global DBG
    DBG = dbg
    a = Asm()
    if dbg: a(f"v_mov_b32 v{V_ST}, 0")
    stamp(a, 0)
    emit_phaseA(a)
    stamp(a, 6)
    if upto >= "B":
        phaseB(a)
        stamp(a, 10)
    if upto >= "C":
        phaseC(a)
        stamp(a, 14)
    a("s_waitcnt vmcnt(0)")
    stamp(a, 8)
    dump_stamps(a)
    a("s_waitcnt vmcnt(0)")
    a.label("L_end")
    a("s_endpgm")
    a.label("L_codeend")
    a.fix_hazards()
    hdr = f"; @launch grid=(256,1,1) block=(512,1,1) lds={LDS_BYTES}\n.amdgcn_target \"amdgcn-amd-amdhsa--gfx950\"\n.text\n.globl {KNAME}\n.p2align 8\n.type {KNAME},@function\n{KNAME}:\n"
    return hdr + a.text() + '.section .rodata,"a"\n' + kernel_footer(KNAME)

if __name__ == "__main__":
    out = sys.argv[1] if len(sys.argv) > 1 else "k3.s"
    open(out, "w").write(build(dbg=('nodbg' not in OPT), upto=os.environ.get("UPTO", "C")))
    print("written", out)
```
